```python
import torch

def _softmax(x, axis=-1):
    return torch.softmax(x, dim=axis)
def _gelu(x):
    return torch.nn.functional.gelu(x, approximate="tanh")
def _silu(x):
    return torch.nn.functional.silu(x)
def _sigmoid(x):
    return torch.sigmoid(x)
def _layernorm(x, axis=-1, eps=1e-5):
    m = x.mean(dim=axis, keepdim=True)
    v = x.var(dim=axis, keepdim=True, unbiased=False)
    return (x - m) / torch.sqrt(v + eps)
def _scatter_add(tgt, idx, src, axis=0):
    return tgt.clone().index_add_(axis, idx, src)
def _segment_sum(src, seg, n):
    out = torch.zeros((n,) + src.shape[1:], dtype=src.dtype)
    return out.index_add_(0, seg, src)
def _pad(x, pw):
    flat = tuple(v for pair in reversed(pw) for v in pair)
    return torch.nn.functional.pad(x, flat)

kernel_name = 'concat_heads__gqa_block_cached__gqa_block_cached__near_ridge'

def setup_inputs():

    _w = (lambda a: (lambda t: t.to(torch.bfloat16) if t.is_floating_point() else t)(torch.as_tensor(a)))
    def _A_setup():
        B, Sq, D = 16, 80, 512
        Hq, Hkv, Sk, Dh = 32, 32, 80, 128
        assert Hq % Hkv == 0, (Hq, Hkv)
        return {
            "x": _w((lambda *s: torch.randn(*s, dtype=torch.bfloat16) * 0.8)(B, Sq, D)),
            "k_cache": _w((lambda *s: torch.randn(*s, dtype=torch.bfloat16) * 0.8)(B, Hkv, Sk, Dh)),
            "v_cache": _w((lambda *s: torch.randn(*s, dtype=torch.bfloat16) * 0.05)(B, Hkv, Sk, Dh)),
            "wq": _w((lambda *s: torch.randn(*s, dtype=torch.bfloat16) * 0.8)(D, Hq * Dh) * (D ** -0.5)),
            "wo": _w((lambda *s: torch.randn(*s, dtype=torch.bfloat16) * 0.05)(Hq * Dh, D) * ((Hq * Dh) ** -0.5)),
        }
    _A_in = _A_setup()

    def _B_setup():
        B, Sq, D = 16, 80, 512
        Hq, Hkv, Sk, Dh = 32, 32, 80, 128
        assert Hq % Hkv == 0, (Hq, Hkv)
        return {
            "x": _w((lambda *s: torch.randn(*s, dtype=torch.bfloat16) * 0.8)(B, Sq, D)),
            "k_cache": _w((lambda *s: torch.randn(*s, dtype=torch.bfloat16) * 0.8)(B, Hkv, Sk, Dh)),
            "v_cache": _w((lambda *s: torch.randn(*s, dtype=torch.bfloat16) * 0.05)(B, Hkv, Sk, Dh)),
            "wq": _w((lambda *s: torch.randn(*s, dtype=torch.bfloat16) * 0.8)(D, Hq * Dh) * (D ** -0.5)),
            "wo": _w((lambda *s: torch.randn(*s, dtype=torch.bfloat16) * 0.05)(Hq * Dh, D) * ((Hq * Dh) ** -0.5)),
        }
    _B_in = _B_setup()

    return {
        "A_x": _A_in["x"],
        "A_k_cache": _A_in["k_cache"],
        "A_v_cache": _A_in["v_cache"],
        "A_wq": _A_in["wq"],
        "A_wo": _A_in["wo"],
        "B_x": _B_in["x"],
        "B_k_cache": _B_in["k_cache"],
        "B_v_cache": _B_in["v_cache"],
        "B_wq": _B_in["wq"],
        "B_wo": _B_in["wo"],
    }

def reference(A_x, A_k_cache, A_v_cache, A_wq, A_wo, B_x, B_k_cache, B_v_cache, B_wq, B_wo):
    def _A_ref(x, k_cache, v_cache, wq, wo):
        B, Sq, D = x.shape
        Hq, Dh = 32, 128
        Hkv = k_cache.shape[1]
        rep = Hq // Hkv
        q = (lambda x, *d: x.permute(*d))((x @ wq).reshape(B, Sq, Hq, Dh), 0, 2, 1, 3)
        k = (lambda x, n, axis: torch.repeat_interleave(x, n, dim=axis))(k_cache, rep, axis=1)
        v = (lambda x, n, axis: torch.repeat_interleave(x, n, dim=axis))(v_cache, rep, axis=1)
        scores = torch.einsum("bhqd,bhkd->bhqk", q, k) * (Dh ** -0.5)
        p = _softmax(scores, axis=-1)
        o = torch.einsum("bhqk,bhkd->bhqd", p, v)
        return (lambda x, *d: x.permute(*d))(o, 0, 2, 1, 3).reshape(B, Sq, Hq * Dh) @ wo

    def _B_ref(x, k_cache, v_cache, wq, wo):
        B, Sq, D = x.shape
        Hq, Dh = 32, 128
        Hkv = k_cache.shape[1]
        rep = Hq // Hkv
        q = (lambda x, *d: x.permute(*d))((x @ wq).reshape(B, Sq, Hq, Dh), 0, 2, 1, 3)
        k = (lambda x, n, axis: torch.repeat_interleave(x, n, dim=axis))(k_cache, rep, axis=1)
        v = (lambda x, n, axis: torch.repeat_interleave(x, n, dim=axis))(v_cache, rep, axis=1)
        scores = torch.einsum("bhqd,bhkd->bhqk", q, k) * (Dh ** -0.5)
        p = _softmax(scores, axis=-1)
        o = torch.einsum("bhqk,bhkd->bhqd", p, v)
        return (lambda x, *d: x.permute(*d))(o, 0, 2, 1, 3).reshape(B, Sq, Hq * Dh) @ wo

    a = _A_ref(A_x, A_k_cache, A_v_cache, A_wq, A_wo)
    b = _B_ref(B_x, B_k_cache, B_v_cache, B_wq, B_wo)
    return torch.concatenate([a, b], axis=-1)
```

```python
import re

def v(i, n=1):
    return f"v{i}" if n == 1 else f"v[{i}:{i+n-1}]"
def a(i, n=1):
    return f"a{i}" if n == 1 else f"a[{i}:{i+n-1}]"
def s(i, n=1):
    return f"s{i}" if n == 1 else f"s[{i}:{i+n-1}]"

class Ins:
    __slots__ = ("t", "vm", "lg", "waitvm", "waitlg")
    def __init__(self, t, vm=None, lg=None, waitvm=None, waitlg=None):
        self.t = t; self.vm = vm; self.lg = lg; self.waitvm = waitvm; self.waitlg = waitlg

def WV(tag): return Ins(None, waitvm=tag)
def WL(tag): return Ins(None, waitlg=tag)

class Asm:
    def __init__(self):
        self.lines = []
        self.vmq = []
        self.lgq = []
        self.issued = {}
    def __call__(self, x, vm=None, lg=None):
        if isinstance(x, (list, tuple)):
            for y in x: self(y)
            return
        if isinstance(x, str):
            x = Ins(x, vm=vm, lg=lg)
        if x.waitvm is not None:
            self.waitvm(x.waitvm); return
        if x.waitlg is not None:
            self.waitlg(x.waitlg); return
        t = x.t
        op = t.split()[0]
        isvm = op.startswith("buffer_") or op.startswith("global_")
        isds = op.startswith("ds_")
        issm = op.startswith("s_load") or op.startswith("s_mem") or op.startswith("s_buffer_load")
        if isvm:
            self.vmq.append(x.vm if x.vm is not None else "_")
            self.issued[x.vm] = self.issued.get(x.vm, 0) + 1
            assert len(self.vmq) <= 63, "vmcnt overflow"
        if isds:
            self.lgq.append(x.lg if x.lg is not None else "_")
        if issm:
            self.lgq.append("SMEM")
        if op == "s_waitcnt":
            m = re.search(r"vmcnt\((\d+)\)", t)
            if m:
                n = int(m.group(1)); self.vmq = self.vmq[len(self.vmq) - n:] if n < len(self.vmq) and n > 0 else ([] if n == 0 else self.vmq)
            m = re.search(r"lgkmcnt\((\d+)\)", t)
            if m:
                n = int(m.group(1))
                assert n == 0 or "SMEM" not in self.lgq
                self.lgq = self.lgq[len(self.lgq) - n:] if n < len(self.lgq) and n > 0 else ([] if n == 0 else self.lgq)
        self.lines.append("    " + t)
    def waitvm(self, tag):
        idx = [i for i, t in enumerate(self.vmq) if t == tag]
        if not idx: return
        n = len(self.vmq) - 1 - idx[-1]
        self(f"s_waitcnt vmcnt({n})")
    def waitlg(self, tag):
        idx = [i for i, t in enumerate(self.lgq) if t == tag]
        if not idx: return
        n = len(self.lgq) - 1 - idx[-1]
        if "SMEM" in self.lgq: n = 0
        n = min(n, 15)
        self(f"s_waitcnt lgkmcnt({n})")
    def label(self, l):
        self.lines.append(l + ":")
    def raw(self, s_):
        self.lines.append(s_)
    def comment(self, s_):
        self.lines.append("    ; " + s_)
    def text(self):
        return "\n".join(self.lines) + "\n"

def kernel_header(A, name):
    A.raw(f".globl {name}")
    A.raw(".p2align 8")
    A.raw(f".type {name},@function")
    A.label(name)
    A.vmq = []; A.lgq = []

def kernel_desc(A, name, vgpr, sgpr, accum):
    A.raw(f".amdhsa_kernel {name}")
    A.raw(f"  .amdhsa_next_free_vgpr {vgpr}")
    A.raw(f"  .amdhsa_next_free_sgpr {sgpr}")
    A.raw(f"  .amdhsa_accum_offset {accum}")
    A.raw("  .amdhsa_group_segment_fixed_size 0")
    A.raw("  .amdhsa_kernarg_size 104")
    A.raw("  .amdhsa_user_sgpr_count 2")
    A.raw("  .amdhsa_user_sgpr_kernarg_segment_ptr 1")
    A.raw("  .amdhsa_system_sgpr_workgroup_id_x 1")
    A.raw(".end_amdhsa_kernel")

_REG = re.compile(r"\b([vas])(\d+)\b|\b([vas])\[(\d+):(\d+)\]|\b(vcc|exec|m0)\b")
def _regs(opnd):
    out = []
    for m in _REG.finditer(opnd):
        if m.group(1): out.append((m.group(1), int(m.group(2))))
        elif m.group(3): out += [(m.group(3), k) for k in range(int(m.group(4)), int(m.group(5)) + 1)]
        else: out.append((m.group(6), 0))
    return out
TRANS = ("v_exp_f32", "v_log_f32", "v_rcp_f32", "v_rsq_f32", "v_sqrt_f32", "v_sin_f32", "v_cos_f32")
def _split(t):
    t = t.split(";")[0].strip()
    p = t.split(None, 1)
    op = p[0]
    ops = [o.strip() for o in p[1].split(",")] if len(p) > 1 else []
    return op, ops
def rw(t):
    op, ops = _split(t)
    if op.startswith("v_mfma"):
        return "mfma", _regs(ops[0]), _regs(ops[1]) + _regs(ops[2]), _regs(ops[3])
    if op.startswith("v_cmp"):
        return "valu", _regs(ops[0]), sum((_regs(o) for o in ops[1:]), []), None
    if op.startswith("v_permlane") and "swap" in op:
        r = _regs(ops[0]) + _regs(ops[1]); return "valu", r, r, None
    if op.startswith("v_"):
        w = _regs(ops[0]); r = sum((_regs(o) for o in ops[1:]), [])
        if op.startswith("v_fmac") or op.startswith("v_pk_fmac") or "dpp" in t: r = r + w
        if op.startswith("v_cndmask") and len(ops) == 3: r = r + [("vcc", 0)]
        return "valu", w, r, None
    if op.startswith("buffer_load") or op.startswith("global_load"):
        if " lds" in t or "_lds_" in op:
            return "vmem", [], sum((_regs(o) for o in ops), []) + [("m0", 0)], None
        return "vmem", _regs(ops[0]), sum((_regs(o) for o in ops[1:]), []), None
    if op.startswith("buffer_store") or op.startswith("buffer_atomic"):
        return "vmem", [], sum((_regs(o) for o in ops), []), ("store", _regs(ops[0]), "x4" in op or "x3" in op)
    if op.startswith("global_store") or op.startswith("global_atomic"):
        return "vmem", [], sum((_regs(o) for o in ops), []), ("store", _regs(ops[1]), "x4" in op or "x3" in op)
    if op.startswith("ds_read") or op.startswith("ds_bpermute") or op.startswith("ds_swizzle"):
        return "ds", _regs(ops[0]), sum((_regs(o) for o in ops[1:]), []), None
    if op.startswith("ds_"):
        return "ds", [], sum((_regs(o) for o in ops), []), None
    if op.startswith("s_"):
        if op.startswith("s_cmp") or op in ("s_waitcnt", "s_barrier", "s_nop", "s_endpgm", "s_branch", "s_setprio", "s_sleep") or op.startswith("s_cbranch"):
            return "salu", [], sum((_regs(o) for o in ops), []), None
        return "salu", _regs(ops[0]), sum((_regs(o) for o in ops[1:]), []), None
    return "other", [], [], None

def check_hazards(text):
    pos = 0
    lastw = {}
    lastc = {}
    lastst = {}
    errs = []
    for ln, line in enumerate(text.split("\n"), 1):
        t = line.strip()
        if not t or t.startswith(";") or t.startswith(".") or t.endswith(":"):
            continue
        op, ops = _split(t)
        kind, W, R, X = rw(t)
        def need(reg, n, why):
            p = lastw.get(reg)
            if p and pos - p[0] - 1 < n:
                errs.append(f"line {ln}: {t}  <- needs {n} wait states after '{p[2]}' on {reg} ({why}), has {pos-p[0]-1}")
        def passes(o): return 8 if "32x32" in o else 4
        allr = list(R) + (list(X) if kind == "mfma" else [])
        for reg in allr:
            p = lastw.get(reg)
            if not p: continue
            pk, pop = p[1], p[2]
            if pk == "valu" and reg[0] in "va":
                if kind == "mfma": need(reg, 2, "valu->mfma")
                if op.startswith("v_permlane"): need(reg, 2, "valu->permlane")
                if "dpp" in t: need(reg, 2, "valu->dpp")
                if op.startswith("v_readfirstlane") or op.startswith("v_readlane"): need(reg, 1, "valu->readlane")
                if pop in TRANS and kind in ("valu",) and op not in TRANS: need(reg, 1, "trans->valu")
            if pk == "valu" and (reg[0] == "s" or reg[0] == "vcc"):
                if kind == "vmem": need(reg, 5, "valu sgpr->vmem")
                if kind == "valu": need(reg, 2, "valu sgpr->valu")
            if pk == "salu" and reg[0] == "m0" and kind == "vmem": need(reg, 1, "m0->lds dma")
            if pk == "mfma":
                n = {4: 8, 8: 12}[passes(pop)]
                if kind == "mfma" and reg in X and reg not in R:
                    if p[3] == tuple(X) and passes(pop) == passes(op): pass
                    else: need(reg, n - 2, "mfma D->C overlap")
                else:
                    need(reg, n, "mfma D->read")
        for reg in W:
            p = lastw.get(reg)
            if p and p[1] == "mfma" and kind != "mfma":
                need(reg, {4: 8, 8: 12}[passes(p[2])], "mfma D->WAW")
            if kind == "valu" and reg in lastc:
                pc, pp = lastc[reg]
                n = {4: 3, 8: 7}[pp]
                if pos - pc - 1 < n: errs.append(f"line {ln}: {t} <- WAR on mfma srcC {reg}")
            if reg in lastst and pos - lastst[reg] - 1 < 2 and kind == "valu":
                errs.append(f"line {ln}: {t} <- WAR on store data {reg}")
        for reg in W:
            lastw[reg] = (pos, kind, op, tuple(W) if kind == "mfma" else None)
        if kind == "mfma":
            for reg in X: lastc[reg] = (pos, passes(op))
        if kind == "vmem" and X and X[2]:
            for reg in X[1]: lastst[reg] = pos
        if op == "s_nop": pos += int(ops[0], 0) + 1
        else: pos += 1
    return errs
```

```python
import sys, math, struct
from asmlib import *

opt = dict(stamps=0, polW="", polX="", polKV="nt", polS="sc1", polR="")
for x in sys.argv[1:]:
    k, val = x.split("="); opt[k] = int(val) if val.isdigit() else val.replace("+", " ")
STAMPS = opt["stamps"]
def pol(p): return (" " + opt[p]) if opt[p] else ""

HDR = open("concat_heads__gqa_block_cached__gqa_block_cached__near_ridge.s.ref").read().split("\n")
A = Asm()
for l in HDR:
    if l.startswith("; Override") : break
    A.raw(l)
A.raw("; @launch kernel=main_kernel grid=(256,1,1) block=(256,1,1) lds=163840")
A.raw("; @launch kernel=reduce_kernel grid=(640,1,1) block=(256,1,1) lds=0")
A.raw('.amdgcn_target "amdgcn-amd-amdhsa--gfx950"')
A.raw(".text")
kernel_header(A, "main_kernel")

nst = [0]
def stamp():
    if not STAMPS: return
    i = nst[0]; nst[0] += 1
    A(f"s_memrealtime s[{70+2*i}:{71+2*i}]")
    A("s_waitcnt lgkmcnt(0)")

SW1, SX, SWS, SK, SV, SW2 = 8, 12, 16, 20, 24, 28
stamp()
A("s_cmp_ge_u32 s2, 256"); A("s_cbranch_scc1 L_main_end")
A("s_load_dwordx16 s[48:63], s[0:1], 0")
A("s_load_dwordx4 s[64:67], s[0:1], 64")
A("s_load_dwordx2 s[16:17], s[0:1], 96")
A("s_lshr_b32 s38, s2, 3")
A("s_and_b32 s33, s38, 15")
A("s_lshr_b32 s38, s38, 4")
A("s_and_b32 s34, s2, 3")
A("s_lshl_b32 s34, s34, 1")
A("s_add_u32 s34, s34, s38")
A("s_bfe_u32 s35, s2, 0x10002")
A("v_lshrrev_b32 v22, 6, v0")
A("v_and_b32 v1, 63, v0")
A("v_and_b32 v2, 15, v0")
A("v_readfirstlane_b32 s32, v22")
A("v_lshrrev_b32 v3, 4, v1")
A("s_mov_b32 s42, 0x05040100"); A("s_mov_b32 s43, 0x07060302")
A("s_lshl_b32 s46, s34, 2"); A("s_add_u32 s46, s46, s32")
A("v_lshlrev_b32 v4, 16, v3")
A("v_lshl_add_u32 v4, v2, 4, v4")
A("s_lshl_b32 s38, s46, 8")
A("v_add_u32 v4, s38, v4")
for e in range(1, 8): A(f"v_add_u32 v{4+e}, {e*8192}, v4")
A("s_waitcnt lgkmcnt(0)")
A("s_cmp_eq_u32 s35, 0")
def srd(dst, pa, pb, size):
    A(f"s_cselect_b32 s{dst}, s{pa}, s{pb}"); A(f"s_cselect_b32 s{dst+1}, s{pa+1}, s{pb+1}")
    A(f"s_mov_b32 s{dst+2}, {size:#x}"); A(f"s_mov_b32 s{dst+3}, 0x20000")
srd(SW1, 54, 64, 0x400000)
srd(SX, 48, 58, 0x140000)
srd(SK, 50, 60, 0xa00000)
srd(SV, 52, 62, 0xa00000)
srd(SW2, 56, 66, 0x400000)
A("s_mov_b32 s18, 0x10000000"); A("s_mov_b32 s19, 0x20000")

RING0, RING = 24, 4
AF0 = RING0 + RING * 32
BF0 = AF0 + 12
def raw(st, e): return RING0 + st * 32 + e * 4
def acc(t, qt): return (qt * 8 + t) * 4

A("s_mov_b32 s36, s33")
def wloads(step):
    st = step % RING
    L = []
    if step < 16:
        L.append("s_lshl_b32 s37, s36, 18")
        for e in range(8):
            L.append(Ins(f"buffer_load_dwordx4 {v(raw(st,e),4)}, v{4+e}, s[{SW1}:{SW1+3}], s37 offen" + pol("polW"), vm=f"W{step}"))
    else:
        L.append("s_lshl_b32 s37, s36, 15")
        for e in range(8):
            off = f" offset:{(e&3)*1024}" if e & 3 else ""
            L.append(Ins(f"buffer_load_dwordx4 {v(raw(st,e),4)}, v{12+(e>>2)}, s[{SW2}:{SW2+3}], s37 offen{off}" + pol("polW"), vm=f"W{step}"))
    L.append("s_add_u32 s36, s36, 1")
    L.append("s_and_b32 s36, s36, 15")
    return L
A(wloads(0))
A("s_mul_i32 s38, s33, 81920")
A("s_mul_i32 s39, s32, 20")
for m in range(20):
    A(f"s_add_u32 s40, s39, {m}")
    A("s_and_b32 s41, s40, 15")
    A("v_xor_b32 v22, s41, v1")
    A("s_lshl_b32 s40, s40, 10")
    A("v_lshlrev_b32 v22, 4, v22")
    A("s_mov_b32 m0, s40")
    A("s_add_u32 s40, s40, s38")
    A(f"buffer_load_dwordx4 v22, s[{SX}:{SX+3}], s40 offen" + pol("polX") + " lds", vm="X")
A(wloads(1)); A(wloads(2))
A("v_lshlrev_b32 v12, 13, v3")
A("v_lshl_add_u32 v12, v2, 4, v12")
A("s_lshl_b32 s38, s34, 19"); A("s_lshl_b32 s39, s32, 8"); A("s_add_u32 s38, s38, s39")
A("v_add_u32 v12, s38, v12")
A("v_add_u32 v13, 4096, v12")
A("v_xor_b32 v14, v2, v3")
A("v_lshlrev_b32 v14, 4, v14")
A("v_lshl_add_u32 v14, v2, 10, v14")
A("v_lshlrev_b32 v22, 2, v3")
A("v_xor_b32 v22, v22, v2")
A("v_lshlrev_b32 v22, 4, v22")
A("v_lshl_add_u32 v17, v3, 8, v22")
for mm in range(1, 4): A(f"v_xor_b32 v{17+mm}, {mm<<4}, v17")
A("v_lshlrev_b32 v21, 10, v3")
A("v_lshl_add_u32 v21, v2, 4, v21")
A("s_lshl_b32 s44, s33, 5"); A("s_add_u32 s44, s44, s46"); A("s_mul_i32 s44, s44, 20480")
A("s_mul_i32 s47, s32, 20480"); A("s_add_u32 s47, s47, 81920")
c_scale = (128 ** -0.5) * math.log2(math.e)
A(f"s_mov_b32 s45, {struct.unpack('<I', struct.pack('<f', c_scale))[0]:#x}")

def kdma():
    L = []
    for grp in range(5):
        for mm in range(4):
            pre = []
            if mm == 0:
                pre = [f"s_add_u32 m0, s47, {grp*4096}", f"s_add_u32 s4, s44, {grp*4096}"]
            off = f" offset:{mm*1024}" if mm else ""
            L.append(pre + [Ins(f"buffer_load_dwordx4 v{17+mm}, s[{SK}:{SK+3}], s4 offen{off}" + pol("polKV") + " lds", vm="K")])
    return L
VR0 = 160
def vraw(jt, e): return VR0 + (jt * 4 + e) * 4
def vloads():
    L = []
    for jt in range(5):
        for e in range(4):
            pre = [f"s_add_u32 s6, s44, {jt*4096}"] if e == 0 else []
            off = f" offset:{e*256}" if e else ""
            L.append(pre + [Ins(f"buffer_load_dwordx4 {a(vraw(jt,e),4)}, v21, s[{SV}:{SV+3}], s6 offen{off}" + pol("polKV"), vm="V")])
    return L

def breads(buf, tag):
    L = ["s_lshl_b32 s41, s40, 6", "v_xor_b32 v15, s41, v14", "v_add_u32 v16, 0x10000, v15"]
    for qt in range(4):
        off = f" offset:{qt*16384}" if qt else ""
        L.append(Ins(f"ds_read_b128 {v(BF0+buf*20+qt*4,4)}, v15{off}", lg=tag))
    L.append(Ins(f"ds_read_b128 {v(BF0+buf*20+16,4)}, v16", lg=tag))
    L += ["s_add_u32 s40, s40, 1", "s_and_b32 s40, s40, 15"]
    return L
def perms(step, t, buf):
    st = step % RING; d = t >> 1
    sel = "s42" if (t & 1) == 0 else "s43"
    return [f"v_perm_b32 v{AF0+buf*4+j}, v{raw(st,2*j+1)+d}, v{raw(st,2*j)+d}, {sel}" for j in range(4)]

def gemm(step0, extra):
    A("s_mov_b32 s40, s33")
    A(breads(0, f"B{step0}"))
    A(WV(f"W{step0}"))
    A(perms(step0, 0, 0))
    A("s_nop 0")
    af = 0
    for ls in range(16):
        step = step0 + ls; bb = ls & 1
        last = ls == 15
        groups = []
        if not last:
            br = breads(bb ^ 1, f"B{step+1}")
            groups += [br[0:3], [br[3]], [br[4]], [br[5]], [br[6]], [br[7]], br[8:10]]
        wl = wloads(step + 3) if step + 3 < 32 else []
        wg = []
        if wl:
            wg = [wl[0:2]] + [[x] for x in wl[2:9]] + [wl[9:11]]
        ex = list(extra[ls]) if extra else []
        slots = [[] for _ in range(24)]
        for k, g_ in enumerate(wg[:8]): slots[k * 3 + 1] += g_
        if wg: slots[23] += wg[8]
        free = [k * 3 for k in range(8)] + [k * 3 + 2 for k in range(8)]
        free.sort()
        order = groups + ex
        assert len(order) <= 15, len(order)
        for k, g_ in enumerate(order): slots[free[k]] += g_
        A(WL(f"B{step}"))
        for t in range(8):
            cs = lambda qt: (a(acc(t, qt), 4) if ls > 0 else "0")
            mf = [f"v_mfma_f32_16x16x32_bf16 {a(acc(t,qt),4)}, {v(AF0+af*4,4)}, {v(BF0+bb*20+qt*4,4)}, {cs(qt)}" for qt in range(5)]
            naf = (af + 1) % 3
            if t < 7: pm = perms(step, t + 1, naf)
            elif not last: pm = [WV(f"W{step+1}")] + perms(step + 1, 0, naf)
            else: pm = []
            A(mf[0]); A(pm[:-2]); A(mf[1]); A(pm[-2:]); A(mf[2]); A(slots[t*3]); A(mf[3]); A(slots[t*3+1]); A(mf[4]); A(slots[t*3+2])
            af = naf

A(WV("X"))
A("s_barrier")
stamp()
kd = kdma(); vl = vloads()
extra = [[] for _ in range(16)]
for k, g_ in enumerate(kd): extra[(k * 8) // 20].append(g_)
for k, g_ in enumerate(vl): extra[8 + (k * 8) // 20].append(g_)
gemm(0, extra)
stamp()
A("s_barrier")

QF0 = 176; S0 = 136; T0 = 120
def qf(qt, u): return QF0 + (qt * 4 + u) * 4
def kf(jt, u): return (jt * 4 + u) * 4
A("s_nop 7")
A("v_and_b32 v22, 3, v2")
A("v_xor_b32 v22, v22, v3")
A("v_lshlrev_b32 v22, 2, v22")
A("v_lshrrev_b32 v23, 2, v2")
A("v_or_b32 v22, v22, v23")
A("v_lshlrev_b32 v22, 4, v22")
A("v_lshl_add_u32 v22, v2, 8, v22")
A(WV("K"))
A("v_add_u32 v17, s47, v22")
for u in range(1, 4): A(f"v_xor_b32 v{17+u}, {u<<4}, v17")
def qcvt(qt):
    L = []
    for u in range(4):
        tb = T0 + (u & 1) * 8
        for t in range(8): L.append(f"v_accvgpr_read_b32 v{tb+t}, a{acc(t,qt)+u}")
        for j in range(4): L.append(f"v_cvt_pk_bf16_f32 v{qf(qt,u)+j}, v{tb+2*j}, v{tb+2*j+1}")
    return L
for qt in range(3): A(qcvt(qt))
for jt in range(5):
    for u in range(4):
        off = f" offset:{jt*4096}" if jt else ""
        A(f"ds_read_b128 {a(kf(jt,u),4)}, v{17+u}{off}", lg="KF")
        if len(A.lgq) >= 15: pass
for qt in range(3, 5): A(qcvt(qt))
A("s_waitcnt lgkmcnt(0)")
def sreg(buf, jt): return S0 + buf * 20 + jt * 4
def smfma(qt):
    buf = qt & 1
    L = []
    for u in range(4):
        for jt in range(5):
            c = v(sreg(buf, jt), 4) if u else "0"
            L.append(f"v_mfma_f32_16x16x32_bf16 {v(sreg(buf,jt),4)}, {a(kf(jt,u),4)}, {v(qf(qt,u),4)}, {c}")
    return L
def pf(qt, jt): return qf(qt, 0) + jt * 2
def softmax(qt):
    b = S0 + (qt & 1) * 20
    m, t1, t2 = T0, T0 + 1, T0 + 2
    L = []
    L.append(f"v_max3_f32 v{m}, v{b}, v{b+1}, v{b+2}")
    L.append(f"v_max3_f32 v{t1}, v{b+3}, v{b+4}, v{b+5}")
    k = 6
    cur = [m, t1]
    while k + 1 < 20:
        r = cur[(k // 2) & 1]
        L.append(f"v_max3_f32 v{r}, v{r}, v{b+k}, v{b+k+1}"); k += 2
    L.append(f"v_max_f32 v{m}, v{m}, v{t1}")
    def xl(op, r):
        return [f"v_mov_b32 v{t1}, v{r}", "s_nop 1", f"v_permlane32_swap_b32 v{r}, v{t1}", f"{op} v{r}, v{r}, v{t1}",
                f"v_mov_b32 v{t1}, v{r}", "s_nop 1", f"v_permlane16_swap_b32 v{r}, v{t1}", f"{op} v{r}, v{r}, v{t1}"]
    L += xl("v_max_f32", m)
    L.append(f"v_mul_f32 v{m}, s45, v{m}")
    for k in range(20): L.append(f"v_fma_f32 v{b+k}, v{b+k}, s45, -v{m}")
    for k in range(20): L.append(f"v_exp_f32 v{b+k}, v{b+k}")
    sm = T0 + 3; sm2 = T0 + 4
    L.append(f"v_add_f32 v{sm}, v{b}, v{b+1}")
    L.append(f"v_add_f32 v{sm2}, v{b+2}, v{b+3}")
    for k in range(4, 20):
        r = sm if k & 1 else sm2
        L.append(f"v_add_f32 v{r}, v{r}, v{b+k}")
    L.append(f"v_add_f32 v{sm}, v{sm}, v{sm2}")
    L += xl("v_add_f32", sm)
    L.append(f"v_rcp_f32 v{sm}, v{sm}")
    L.append("s_nop 0")
    for k in range(20): L.append(f"v_mul_f32 v{b+k}, v{b+k}, v{sm}")
    for jt in range(5):
        for j in range(2): L.append(f"v_cvt_pk_bf16_f32 v{pf(qt,jt)+j}, v{b+jt*4+2*j}, v{b+jt*4+2*j+1}")
    return L
def merge(mf, va, lead=0):
    out = []; n = len(mf)
    per = (len(va) - lead) / max(n, 1)
    vi = 0
    for _ in range(lead): out.append(va[vi]); vi += 1
    for k, m_ in enumerate(mf):
        out.append(m_)
        tgt = lead + int(round((k + 1) * per))
        while vi < tgt and vi < len(va): out.append(va[vi]); vi += 1
    out += va[vi:]
    return out
A(smfma(0))
for qt in range(5):
    if qt < 4:
        mf = smfma(qt + 1)
        sv = softmax(qt)
        A(mf[:8])
        A(merge(mf[8:], sv[:80])); A(sv[80:])
    else:
        A("s_nop 7")
        A(softmax(qt))
stamp()
A(WV("V"))
VT0 = S0
def vprep(m, d, buf):
    tb = VT0 + buf * 16; fb = tb + 8
    L = []
    jts = [2 * m, 2 * m + 1] if m < 2 else [4]
    k = 0
    for jt in jts:
        for e in range(4):
            L.append(f"v_accvgpr_read_b32 v{tb+k}, a{vraw(jt,e)+d}"); k += 1
    n = len(jts) * 2
    for half, sel in ((0, "s42"), (1, "s43")):
        for j in range(n):
            L.append(f"v_perm_b32 v{fb+half*4+j}, v{tb+2*j+1}, v{tb+2*j}, {sel}")
    return L
def pvmfma(m, d, buf):
    fb = VT0 + buf * 16 + 8
    L = []
    for half in range(2):
        t = 2 * d + half
        for qt in range(5):
            c = a(acc(t, qt), 4) if m else "0"
            if m < 2:
                L.append(f"v_mfma_f32_16x16x32_bf16 {a(acc(t,qt),4)}, {v(fb+half*4,4)}, {v(pf(qt,2*m),4)}, {c}")
            else:
                L.append(f"v_mfma_f32_16x16x16_bf16 {a(acc(t,qt),4)}, {v(fb+half*4,2)}, {v(pf(qt,4),2)}, {c}")
    return L
seq = [(m, d) for m in range(3) for d in range(4)]
A(vprep(*seq[0], 0)); A("s_nop 1")
for k, (m, d) in enumerate(seq):
    mf = pvmfma(m, d, k & 1)
    if k + 1 < len(seq):
        nx = vprep(*seq[k + 1], (k + 1) & 1)
        A(merge(mf[:8], nx)); A(mf[8:])
    else:
        A(mf)
stamp()
A("v_lshlrev_b32 v22, 2, v3")
A("v_xor_b32 v22, v22, v2")
A("v_lshlrev_b32 v22, 4, v22")
A("v_lshl_add_u32 v22, v2, 10, v22")
A("s_lshl_b32 s38, s32, 8")
A("v_add_u32 v17, s38, v22")
for r in range(1, 4): A(f"v_xor_b32 v{17+r}, {r<<4}, v17")
A("s_nop 1")
k = 0
for qt in range(5):
    for r in range(4):
        tb = T0 + (k & 1) * 8; ob = QF0 + (k % 16) * 4
        for t in range(8): A(f"v_accvgpr_read_b32 v{tb+t}, a{acc(t,qt)+r}")
        for j in range(4): A(f"v_cvt_pk_bf16_f32 v{ob+j}, v{tb+2*j}, v{tb+2*j+1}")
        if qt == 4:
            A(f"v_add_u32 v22, 0x10000, v{17+r}")
            A(f"ds_write_b128 v22, {v(ob,4)}")
        else:
            off = f" offset:{qt*16384}" if qt else ""
            A(f"ds_write_b128 v{17+r}, {v(ob,4)}{off}")
        if k == 15: A("s_waitcnt lgkmcnt(8)")
        k += 1
A("s_waitcnt lgkmcnt(0)")
A("s_barrier")
stamp()
gemm(16, None)
stamp()
A("s_lshl_b32 s38, s35, 4"); A("s_add_u32 s38, s38, s33"); A("s_lshl_b32 s38, s38, 3"); A("s_add_u32 s38, s38, s34")
A("s_lshl_b32 s38, s38, 2"); A("s_add_u32 s38, s38, s32"); A("s_mul_i32 s38, s38, 20480")
A("v_lshlrev_b32 v22, 4, v1")
A("s_nop 1")
k = 0
for qt in range(5):
    A(f"s_add_u32 s39, s38, {qt*4096}")
    for r in range(4):
        tb = RING0 + (k & 1) * 8; ob = RING0 + 16 + k * 4
        for t in range(8): A(f"v_accvgpr_read_b32 v{tb+t}, a{acc(t,qt)+r}")
        for j in range(4): A(f"v_cvt_pk_bf16_f32 v{ob+j}, v{tb+2*j}, v{tb+2*j+1}")
        off = f" offset:{r*1024}" if r else ""
        A(f"buffer_store_dwordx4 {v(ob,4)}, v22, s[{SWS}:{SWS+3}], s39 offen{off}" + pol("polS"))
        k += 1
if STAMPS:
    stamp()
    A("s_waitcnt vmcnt(0)")
    stamp()
    n = nst[0]
    A("s_lshl_b32 s38, s2, 2"); A("s_add_u32 s38, s38, s32"); A(f"s_mul_i32 s38, s38, {n*8}"); A(f"s_add_u32 s38, s38, {200<<20}")
    for i in range(2 * n): A(f"v_mov_b32 v{24+i}, s{70+i}")
    A("v_mov_b32 v22, 0")
    A("v_cmp_eq_u32 vcc, 0, v1")
    A("s_and_saveexec_b64 s[4:5], vcc")
    for i in range(n):
        A(f"buffer_store_dwordx2 {v(24+2*i,2)}, v22, s[{SWS}:{SWS+3}], s38 offen offset:{i*8}")
    sys.stderr.write(f"stamps per wave: {n}\n")
A.label("L_main_end")
A("s_endpgm")

kernel_header(A, "reduce_kernel")
A("s_cmp_ge_u32 s2, 640"); A("s_cbranch_scc1 L_red_end")
A("s_load_dwordx2 s[8:9], s[0:1], 96")
A("s_load_dwordx2 s[12:13], s[0:1], 80")
A("s_mul_hi_u32 s4, s2, 0x33333334")
A("s_mul_i32 s5, s4, 5"); A("s_sub_u32 s5, s2, s5")
A("s_and_b32 s6, s4, 3")
A("s_lshr_b32 s7, s4, 2")
A("s_mov_b32 s10, 0x10000000"); A("s_mov_b32 s11, 0x20000")
A("s_mov_b32 s14, 0x280000"); A("s_mov_b32 s15, 0x20000")
A("s_lshl_b32 s16, s7, 5"); A("s_add_u32 s16, s16, s6"); A("s_mul_i32 s16, s16, 20480")
A("s_lshl_b32 s17, s5, 12"); A("s_add_u32 s16, s16, s17")
A("v_lshlrev_b32 v1, 4, v0")
A("s_waitcnt lgkmcnt(0)")
for hg in range(8):
    A(f"buffer_load_dwordx4 {v(8+hg*4,4)}, v1, s[8:11], s16 offen" + pol("polR"), vm=f"P{hg}")
    if hg < 7: A(f"s_add_u32 s16, s16, {4*20480}")
A("v_and_b32 v2, 15, v0")
A("v_bfe_u32 v3, v0, 4, 2")
A("v_lshrrev_b32 v4, 6, v0")
A("v_lshlrev_b32 v2, 11, v2")
A("v_lshl_add_u32 v2, v3, 6, v2")
A("v_lshl_add_u32 v2, v4, 4, v2")
A("s_and_b32 s18, s7, 15"); A("s_mul_i32 s18, s18, 80"); A("s_lshl_b32 s19, s5, 4"); A("s_add_u32 s18, s18, s19"); A("s_lshl_b32 s18, s18, 11")
A("s_lshr_b32 s19, s7, 4"); A("s_lshl_b32 s19, s19, 10"); A("s_add_u32 s18, s18, s19")
A("s_lshl_b32 s19, s6, 8"); A("s_add_u32 s18, s18, s19")
A("s_mov_b32 s20, 0xffff0000")
for hg in range(8):
    A(WV(f"P{hg}"))
    for j in range(4):
        src = 8 + hg * 4 + j
        if hg == 0:
            A(f"v_lshlrev_b32 v{40+2*j}, 16, v{src}")
            A(f"v_and_b32 v{41+2*j}, s20, v{src}")
        else:
            A(f"v_lshlrev_b32 v5, 16, v{src}")
            A(f"v_and_b32 v6, s20, v{src}")
            A(f"v_add_f32 v{40+2*j}, v{40+2*j}, v5")
            A(f"v_add_f32 v{41+2*j}, v{41+2*j}, v6")
for j in range(4): A(f"v_cvt_pk_bf16_f32 v{48+j}, v{40+2*j}, v{41+2*j}")
A("buffer_store_dwordx4 v[48:51], v2, s[12:15], s18 offen")
A.label("L_red_end")
A("s_endpgm")

A.raw('.section .rodata,"a"')
A.raw(".p2align 6")
kernel_desc(A, "main_kernel", 512, 100, 256)
A.raw(".p2align 6")
kernel_desc(A, "reduce_kernel", 56, 24, 56)
txt = A.text()
errs = check_hazards(txt)
for e in errs[:40]: sys.stderr.write("HAZARD " + e + "\n")
sys.stderr.write(f"{len(errs)} hazards, {len(txt)} bytes\n")
print(txt)
```

```python
import sys
from asmlib import *
kind = sys.argv[1]
src = open(sys.argv[2] if len(sys.argv) > 2 else 't_a.s').read()
L1="; @launch kernel=main_kernel grid=(256,1,1) block=(256,1,1) lds=163840\n"
A = Asm()
kernel_header(A, "pre_kernel")
sizes = [0x140000, 0xa00000, 0xa00000, 0x400000, 0x400000] * 2
if kind == "empty":
    grid = 256
elif kind.startswith("touch"):
    stride = int(kind[5:])
    grid = 256
    A("s_cmp_ge_u32 s2, 256"); A("s_cbranch_scc1 L_pre_end")
    A(f"v_lshlrev_b32 v1, {stride}, v0")
    for i, sz in enumerate(sizes + [0x280000, 0, 0x1500000]):
        if sz == 0: continue
        A(f"s_load_dwordx2 s[4:5], s[0:1], {i*8}")
        A(f"s_mov_b32 s6, {sz:#x}"); A("s_mov_b32 s7, 0x20000")
        A("s_waitcnt lgkmcnt(0)")
        n = (sz + (256 << stride) - 1) // (256 << stride)
        for k in range(n):
            A(f"s_mov_b32 s8, {k * (256 << stride):#x}")
            A(f"buffer_load_dword v{2+(k&7)}, v1, s[4:7], s8 offen")
        A("s_waitcnt vmcnt(0)")
elif kind.startswith("read"):
    pol = " nt" if kind.endswith("nt") else ""
    grid = 1024
    A("s_cmp_ge_u32 s2, 1024"); A("s_cbranch_scc1 L_pre_end")
    A("v_lshlrev_b32 v1, 4, v0")
    A("s_load_dwordx16 s[16:31], s[0:1], 0")
    A("s_load_dwordx4 s[32:35], s[0:1], 64")
    A("s_waitcnt lgkmcnt(0)")
    r = 4
    for i, sz in enumerate(sizes):
        per = sz // 1024
        A(f"s_mov_b32 s{36+4*i}, s{16+2*i}"); A(f"s_mov_b32 s{37+4*i}, s{17+2*i}"); A(f"s_mov_b32 s{38+4*i}, {sz:#x}"); A(f"s_mov_b32 s{39+4*i}, 0x20000")
        A(f"s_mul_i32 s8, s2, {per}")
        for k in range((per + 4095) // 4096):
            A(f"buffer_load_dwordx4 {v(r,4)}, v1, s[{36+4*i}:{39+4*i}], s8 offen{pol}")
            A("s_add_u32 s8, s8, 4096")
            r += 4
    A("s_waitcnt vmcnt(0)")
A.label("L_pre_end")
A("s_endpgm")
body = A.text()
D = Asm(); D.raw(".p2align 6"); kernel_desc(D, "pre_kernel", 128, 96, 128)
out = src.replace(L1, f"; @launch kernel=pre_kernel grid=({grid},1,1) block=(256,1,1) lds=0\n" + L1)
out = out.replace('.section .rodata,"a"', body + '.section .rodata,"a"')
out += D.text()
print(out)
```

```python
import sys
from asmlib import *
src = open(sys.argv[1]).read(); n = int(sys.argv[2]); wg = int(sys.argv[3]); ia = int(sys.argv[4]); ib = sys.argv[5]
L2="; @launch kernel=reduce_kernel grid=(640,1,1) block=(256,1,1) lds=0\n"
A = Asm()
kernel_header(A, "diag_kernel")
A("s_load_dwordx2 s[4:5], s[0:1], 96")
A("s_memrealtime s[10:11]")
A("s_cmp_lg_u32 s2, 0"); A("s_cbranch_scc1 L_diag_end")
A("s_mov_b32 s6, 0x10000000"); A("s_mov_b32 s7, 0x20000")
A("s_waitcnt lgkmcnt(0)")
base = (200 << 20) + wg * 4 * n * 8
A("v_mov_b32 v1, 0")
A(f"s_mov_b32 s8, {base + ia*8}")
A("buffer_load_dword v2, v1, s[4:7], s8 offen")
if ib != "now":
    A(f"s_mov_b32 s8, {base + int(ib)*8}")
    A("buffer_load_dword v3, v1, s[4:7], s8 offen")
else:
    A("v_mov_b32 v3, s10")
A("s_waitcnt vmcnt(0)")
A("v_sub_u32 v2, v3, v2")
A("v_min_u32 v2, 10000, v2")
A("v_lshlrev_b32 v2, 2, v2")
A("s_nop 1")
A("v_readfirstlane_b32 s12, v2")
A.label("L_spin")
A("s_memrealtime s[14:15]")
A("s_waitcnt lgkmcnt(0)")
A("s_sub_u32 s16, s14, s10")
A("s_cmp_lt_u32 s16, s12")
A("s_cbranch_scc1 L_spin")
A.label("L_diag_end")
A("s_endpgm")
D = Asm(); D.raw(".p2align 6"); kernel_desc(D, "diag_kernel", 8, 24, 8)
out = src.replace(L2, L2 + "; @launch kernel=diag_kernel grid=(1,1,1) block=(64,1,1) lds=0\n")
out = out.replace('.section .rodata,"a"', A.text() + '.section .rodata,"a"')
out += D.text()
print(out)
```

```python
import sys, math, struct
from asmlib import *

opt = dict(stamps=0, polW="", polX="", polK="nt", polV="nt", polS="sc1", polO="", vfrac=30, nw1=0, fine=0, cpf=1,
           sched="0:X1/3:X2.V4/5:K5/7:X3.V4/9:K5/11:K5.V4/13:K5", spr=0)
for x in sys.argv[1:]:
    k, val = x.split("="); opt[k] = int(val) if val.lstrip("-").isdigit() else val.replace("+", " ")
STAMPS = opt["stamps"]
def pol(p): return (" " + opt[p]) if opt[p] else ""

KN = "concat_heads__gqa_block_cached__gqa_block_cached__near_ridge_kernel"
HDR = open("concat_heads__gqa_block_cached__gqa_block_cached__near_ridge.s.ref").read().split("\n")
A = Asm()
for l in HDR:
    if l.startswith("; Override") : break
    A.raw(l)
A.raw("; @launch grid=(256,1,1) block=(256,1,1) lds=163840")
A.raw('.amdgcn_target "amdgcn-amd-amdhsa--gfx950"')
A.raw(".text")
kernel_header(A, KN)

nst = [0]
def sreg_st(i): return 68 if i == 0 else 48 + 2 * (i - 1)
def stamp():
    if not STAMPS: return
    i = nst[0]; nst[0] += 1
    A(f"{'s_memtime' if STAMPS == 2 else 's_memrealtime'} s[{sreg_st(i)}:{sreg_st(i)+1}]")
    A("s_waitcnt lgkmcnt(0)")

SW1, SX, SWS, SK, SV, SW2, SDBG, SOUT = 8, 12, 16, 20, 24, 28, 76, 80
FLAG_OFF = 32 << 20
OOB = 0x7f000000
def R(x): return f"s[{x}:{x+3}]"
stamp()
A("s_load_dwordx16 s[48:63], s[0:1], 0")
A("s_load_dwordx4 s[64:67], s[0:1], 64")
A("s_load_dwordx2 s[16:17], s[0:1], 96")
A("s_load_dwordx4 s[80:83], s[0:1], 80")
A("s_cmp_ge_u32 s2, 256"); A("s_cbranch_scc1 L_main_end")
A("s_lshr_b32 s38, s2, 3")
A("s_and_b32 s33, s38, 15")
if opt["cpf"]:
    A("s_getpc_b64 s[76:77]")
    A.label("L_pc")
    A(f"s_sub_u32 s76, s76, L_pc-{KN}"); A("s_subb_u32 s77, s77, 0")
    A(f"s_mov_b32 s78, L_code_end-{KN}"); A("s_mov_b32 s79, 0x20000")
    A("s_lshl_b32 s39, s33, 12")
    A("v_lshlrev_b32 v24, 4, v0")
    A("buffer_load_dwordx4 v[28:31], v24, s[76:79], s39 offen", vm="CPF")
A("s_lshr_b32 s38, s38, 4")
A("s_and_b32 s34, s2, 3")
A("s_lshl_b32 s34, s34, 1")
A("s_add_u32 s34, s34, s38")
A("s_bfe_u32 s35, s2, 0x10002")
A("v_lshrrev_b32 v22, 6, v0")
A("v_and_b32 v1, 63, v0")
A("v_and_b32 v2, 15, v0")
A("v_readfirstlane_b32 s32, v22")
A("v_lshrrev_b32 v3, 4, v1")
A("s_mov_b32 s42, 0x05040100"); A("s_mov_b32 s43, 0x07060302")
A("s_lshl_b32 s46, s34, 2"); A("s_add_u32 s46, s46, s32")
A("v_lshlrev_b32 v4, 16, v3")
A("v_lshl_add_u32 v4, v2, 4, v4")
A("s_lshl_b32 s38, s46, 8")
A("v_add_u32 v4, s38, v4")
for e in range(1, 8): A(f"v_add_u32 v{4+e}, {e*8192}, v4")
A("v_xor_b32 v23, v2, v3")
A("v_lshlrev_b32 v23, 4, v23")
A("v_lshl_add_u32 v0, v3, 10, v23")
A("s_lshr_b32 s38, s33, 2")
for j in range(4):
    A(f"s_add_u32 s{84+j}, s38, {j}"); A(f"s_and_b32 s{84+j}, s{84+j}, 3")
    A(f"s_add_u32 s{88+j}, s33, {j}"); A(f"s_and_b32 s{88+j}, s{88+j}, 3")
A("s_mul_i32 s100, s33, 81920")
A("s_mul_i32 s39, s32, 20480")
A("s_add_u32 s100, s100, s39")
A("s_mul_i32 s101, s32, 5120")
for m in range(5):
    A(f"s_add_u32 s{70+m}, s32, {m}"); A(f"s_and_b32 s{70+m}, s{70+m}, 3"); A(f"s_lshl_b32 s{70+m}, s{70+m}, 6")
A("s_waitcnt lgkmcnt(0)")
A("s_cmp_eq_u32 s35, 0")
def srd(dst, pa, pb, size):
    A(f"s_cselect_b32 s{dst}, s{pa}, s{pb}"); A(f"s_cselect_b32 s{dst+1}, s{pa+1}, s{pb+1}")
    A(f"s_mov_b32 s{dst+2}, {size:#x}"); A(f"s_mov_b32 s{dst+3}, 0x20000")
srd(SW1, 54, 64, 0x400000)
srd(SX, 48, 58, 0x140000)
srd(SK, 50, 60, 0xa00000)
srd(SV, 52, 62, 0xa00000)
srd(SW2, 56, 66, 0x400000)

RING0, RING = 24, 4
AF0 = RING0 + RING * 32
TMP0 = AF0 + 12
QF0 = 176
BF0 = 160
def stage(step): return step % RING
def raw(st, e): return RING0 + st * 32 + e * 4
def acc(t, qt): return (qt * 8 + t) * 4
def bf(ls, qt): return BF0 + (ls % 3) * 20 + qt * 4

def wloads(step):
    st = stage(step); ls = step & 15
    L = [f"s_lshl_b32 s37, s{84+(ls>>2)}, 2", f"s_add_u32 s37, s37, s{88+(ls&3)}"]
    if step < 16:
        L.append("s_lshl_b32 s37, s37, 18")
        for e in range(8):
            L.append(Ins(f"buffer_load_dwordx4 {v(raw(st,e),4)}, v{4+e}, {R(SW1)}, s37 offen" + pol("polW"), vm=f"W{step}"))
    else:
        L.append("s_lshl_b32 s37, s37, 15")
        for e in range(8):
            off = f" offset:{(e&3)*1024}" if e & 3 else ""
            L.append(Ins(f"buffer_load_dwordx4 {v(raw(st,e),4)}, v{12+(e>>2)}, {R(SW2)}, s37 offen{off}" + pol("polW"), vm=f"W{step}"))
    return L
def wgroups(step):
    wl = wloads(step)
    return [wl[0:4]] + [[x] for x in wl[4:]]
def xdma_groups(j):
    G = []
    for m in range(5):
        pre = [f"s_lshl_b32 s40, s{84+j}, 8", "s_add_u32 s40, s40, s100"] if m == 0 else []
        G.append(pre + [f"v_xor_b32 v22, s{70+m}, v0", f"s_add_u32 m0, s101, {j*20480+m*1024}", f"s_add_u32 s5, s40, {m*4096}",
              Ins(f"buffer_load_dwordx4 v22, {R(SX)}, s5 offen" + pol("polX") + " lds", vm=f"X{j}")])
    return G
A(wloads(0))
for g_ in xdma_groups(0): A(g_)
A(wloads(1))
A("s_mov_b32 s18, 0x10000000"); A("s_mov_b32 s19, 0x20000")
A("s_lshl_b32 s7, s35, 4"); A("s_add_u32 s7, s7, s33")
A("s_lshl_b32 s75, s7, 2"); A("s_add_u32 s75, s75, s32"); A("s_lshl_b32 s75, s75, 7")
A("s_lshl_b32 s38, s34, 2"); A("s_add_u32 s75, s75, s38"); A(f"s_add_u32 s75, s75, {FLAG_OFF:#x}")
A("v_mov_b32 v16, 0")
A("s_mov_b64 exec, 1")
A(f"buffer_store_dword v16, v16, {R(SWS)}, s75 offen sc1", vm="FCLR")
A("s_mov_b64 exec, -1")
A("s_mov_b32 s76, s82"); A("s_mov_b32 s77, s83"); A("s_mov_b32 s78, 256"); A("s_mov_b32 s79, 0x20000")
A("s_mov_b32 s82, 0x280000"); A("s_mov_b32 s83, 0x20000")
A("v_lshlrev_b32 v12, 12, v3")
A("v_lshl_add_u32 v12, v2, 4, v12")
A("s_lshl_b32 s38, s34, 19"); A("s_lshl_b32 s39, s32, 8"); A("s_add_u32 s38, s38, s39")
A("v_add_u32 v12, s38, v12")
A("v_add_u32 v13, 0x4000, v12")
A("v_lshl_add_u32 v14, v2, 8, v23")
for j in range(4):
    A(f"s_mov_b32 s{92+j}, {j*20480}"); A(f"s_lshl_b32 s{96+j}, s{88+j}, 6")
A("v_lshlrev_b32 v16, 2, v3")
A("v_xor_b32 v16, v16, v2")
A("v_lshlrev_b32 v16, 4, v16")
A("v_lshl_add_u32 v17, v3, 8, v16")
for mm in range(1, 4): A(f"v_xor_b32 v{17+mm}, {mm<<4}, v17")
A("v_lshlrev_b32 v16, 1, v3")
A("v_xor_b32 v16, v16, v2")
A("v_lshlrev_b32 v16, 4, v16")
A("v_lshl_add_u32 v21, v3, 8, v16")
A("v_xor_b32 v23, 128, v21")
A("s_lshl_b32 s36, s33, 5"); A("s_add_u32 s36, s36, s46"); A("s_mul_i32 s36, s36, 20480")
A("s_lshl_b32 s3, s32, 12")
A("s_mul_i32 s47, s32, 20480"); A("s_add_u32 s47, s47, 81920")
c_scale = (128 ** -0.5) * math.log2(math.e)
cbits = struct.unpack('<I', struct.pack('<f', c_scale))[0]
A(f"s_mov_b32 s44, {cbits:#x}"); A(f"s_mov_b32 s45, {cbits:#x}")

def kdma():
    L = []
    for grp in range(5):
        for mm in range(4):
            pre = [f"s_add_u32 m0, s47, {grp*4096}", f"s_add_u32 s4, s36, {grp*4096}"]
            off = f" offset:{mm*1024}" if mm else ""
            L.append(pre + [Ins(f"buffer_load_dwordx4 v{17+mm}, {R(SK)}, s4 offen{off}" + pol("polK") + " lds", vm="K")])
    return L
def vdma():
    L = []
    for grp in range(5):
        for mm in range(4):
            pre = [f"s_add_u32 m0, s3, {grp*16384}", f"s_add_u32 s6, s36, {grp*4096}"]
            off = f" offset:{mm*1024}" if mm else ""
            L.append(pre + [Ins(f"buffer_load_dwordx4 v{21 if (mm&1)==0 else 23}, {R(SV)}, s6 offen{off}" + pol("polV") + " lds", vm="V")])
    return L
def compact(groups):
    out = []; last = {}
    for g_ in groups:
        for x in g_:
            if isinstance(x, str) and x.startswith("s_add_u32 "):
                dst = x.split()[1]
                if last.get(dst) == x: continue
                last[dst] = x
            out.append(x)
    return out

def breads(ls, tag):
    L = [f"v_xor_b32 v15, s{96+(ls&3)}, v14", f"v_add_u32 v15, s{92+(ls>>2)}, v15"]
    for qt in range(5):
        off = f" offset:{qt*4096}" if qt else ""
        L.append(Ins(f"ds_read_b128 {a(bf(ls,qt),4)}, v15{off}", lg=tag))
    return L
def perms(step, t, buf):
    st = stage(step); d = t >> 1
    sel = "s42" if (t & 1) == 0 else "s43"
    return [f"v_perm_b32 v{AF0+buf*4+j}, v{raw(st,2*j+1)+d}, v{raw(st,2*j)+d}, {sel}" for j in range(4)]

TL = 3
def gemm(step0, extra, wl_of, pre_of, hook, tail_at):
    seq = [(ls, t) for ls in range(16 - TL) for t in range(8)] + [(ls, t) for t in range(8) for ls in range(16 - TL, 16)]
    A(breads(0, f"B{step0}"))
    A(WV(f"W{step0}"))
    A(perms(step0, 0, 0))
    A("s_nop 0")
    fill = [[[], [], []] for _ in seq]
    for ls in range(16 - TL):
        groups = []
        for ws_ in wl_of.get(ls, []): groups += wgroups(ws_)
        groups += list(extra[ls]) if extra else []
        brs = [ls + 1] if ls + 1 < 16 - TL else [ls + 1, ls + 2]
        brg = []
        for b_ in brs:
            br = breads(b_, f"B{step0+b_}")
            brg += [br[0:3]] + [[x] for x in br[3:]]
        base = ls * 8
        for k, g_ in enumerate(brg):
            fill[base + (k if len(brg) <= 8 else (k * 8) // len(brg))][2] += g_
        avail = [(t, c) for t in range(8) for c in (0, 1)]
        if len(groups) > 16: avail = sorted(avail + [(t, 2) for t in range(len(brg), 8)])
        if len(groups) <= 8: avail = [(t, 1) for t in range(8)]
        assert len(groups) <= len(avail), (ls, len(groups))
        for k, g_ in enumerate(groups): fill[base + avail[k][0]][avail[k][1]] += g_
    tb = (16 - TL) * 8
    br = breads(15, f"B{step0+15}")
    fill[tb][0] += br[0:4]; fill[tb][1] += br[4:6]; fill[tb][2] += br[6:]
    for d in range(3):
        ops = hook(d)
        slots = [(tb + (2 * d + 2) * TL + k // 3, k % 3) for k in range(2 * TL * 3)][1:]
        n = len(slots)
        for k, o in enumerate(ops):
            gi, c = slots[(k * n) // len(ops)]
            fill[gi][c].append(o)
    for gi, L_ in (tail_at or {}).items(): fill[tb + gi][2] += L_
    af = 0
    seen = set()
    for n_, (ls, t) in enumerate(seq):
        step = step0 + ls
        if ls not in seen:
            A(WL(f"B{step}")); seen.add(ls)
            A(pre_of.get(ls, []))
            if opt["fine"] and step0 == 0 and ls in (4, 8, 13): stamp()
        cs = lambda qt: (a(acc(t, qt), 4) if ls > 0 else "0")
        mf = [f"v_mfma_f32_16x16x32_bf16 {a(acc(t,qt),4)}, {v(AF0+af*4,4)}, {a(bf(ls,qt),4)}, {cs(qt)}" for qt in range(5)]
        naf = (af + 1) % 3
        if n_ + 1 < len(seq):
            nls, nt = seq[n_ + 1]
            assert A.issued.get(f"W{step0+nls}", 0) == 8, (step0, nls)
            pm = [WV(f"W{step0+nls}")] + perms(step0 + nls, nt, naf)
        else: pm = []
        f = fill[n_]
        A(mf[0]); A(pm[:3]); A(mf[1]); A(pm[3:]); A(mf[2]); A(f[0]); A(mf[3]); A(f[1]); A(mf[4]); A(f[2])
        af = naf
    return hook(3)

def qf(qt, u): return QF0 + (qt * 4 + u) * 4
def cvt_hook(dst):
    def h(d):
        L = []
        for qt in range(5):
            for half in range(2):
                tb_ = TMP0 + ((qt * 2 + half) % 3) * 4
                for rr in range(2):
                    r = half * 2 + rr
                    L.append(f"v_accvgpr_read_b32 v{tb_+2*rr}, a{acc(2*d,qt)+r}")
                    L.append(f"v_accvgpr_read_b32 v{tb_+2*rr+1}, a{acc(2*d+1,qt)+r}")
                for rr in range(2):
                    r = half * 2 + rr
                    L.append(f"v_cvt_pk_bf16_f32 v{dst(d,qt,r)}, v{tb_+2*rr}, v{tb_+2*rr+1}")
            L += dst.after(d, qt)
        return L
    return h
class QDst:
    def __call__(self, d, qt, r): return qf(qt, r) + d
    def after(self, d, qt): return []

A(WV("X0"))
A("s_barrier")
stamp()
kq = kdma(); vq = vdma()
extra = [[] for _ in range(16)]
pre1 = {3: [WV("X1"), "s_barrier"], 7: [WV("X2"), "s_barrier"], 11: [WV("X3"), "s_barrier"]}
nv_done = 0
for item in opt["sched"].split("/"):
    st_, what = item.split(":"); st_ = int(st_)
    G_ = []
    for w_ in what.split("."):
        n_ = int(w_[1:])
        if w_[0] == "X": G_ += xdma_groups(n_)
        elif w_[0] == "K": G_ += kq[:n_]; kq = kq[n_:]
        else:
            G_ += vq[:n_]; vq = vq[n_:]; nv_done += n_
            assert nv_done <= 4 * ((st_ + 1) // 4) and nv_done <= 12, "V piece would overwrite live x"
    if opt["spr"] and st_ < 16 - TL: extra[st_] += G_
    else: pre1[st_] = pre1.get(st_, []) + compact(G_)
assert not kq
wl1 = {}
nxt = 2
for s_ in range(16 - TL):
    wl1[s_] = []
    tgt = min(s_ + 3, 15)
    if nxt <= tgt: wl1[s_].append(nxt); nxt += 1
    if nxt <= tgt and s_ == 2: wl1[s_].append(nxt); nxt += 1
assert nxt == 16
left = gemm(0, extra, wl1, pre1, cvt_hook(QDst()), None)
stamp()
A("s_barrier")
A("s_lshl_b32 s38, s7, 3"); A("s_add_u32 s38, s38, s34")
A("s_cmp_eq_u32 s32, 0"); A("s_cselect_b32 s38, s38, 0x1000")
A("v_mov_b32 v16, 0"); A("v_mov_b32 v22, 1")
A("s_mov_b64 exec, 1")
CLRD = [Ins(f"buffer_store_byte v22, v16, {R(SDBG)}, s38 offen sc1", vm="CLRD")]
A(WV("K"))
A(CLRD)
A("s_mov_b64 exec, -1")

def sprinkle(code, groups):
    if not groups: return list(code)
    out = []; n = len(code); gi = 0; m = len(groups)
    for i, c in enumerate(code):
        while gi < m and gi * n <= i * m:
            out += groups[gi]; gi += 1
        out.append(c)
    for g_ in groups[gi:]: out += g_
    return out

S0 = 124; T0 = 120
def kf(jt, u): return 160 + (u * 5 + jt) * 4
C1 = []
C1 += ["v_and_b32 v22, 3, v2", "v_xor_b32 v22, v22, v3", "v_lshlrev_b32 v22, 2, v22", "v_lshrrev_b32 v16, 2, v2", "v_or_b32 v22, v22, v16",
       "v_lshlrev_b32 v22, 4, v22", "v_lshl_add_u32 v22, v2, 8, v22", "v_add_u32 v17, s47, v22"]
for u in range(1, 4): C1.append(f"v_xor_b32 v{17+u}, {u<<4}, v17")
for u in range(4):
    for jt in range(5):
        off = f" offset:{jt*4096}" if jt else ""
        C1.append(Ins(f"ds_read_b128 {a(kf(jt,u),4)}, v{17+u}{off}", lg="KF"))
C1 += left
C1.append("s_waitcnt lgkmcnt(0)")
def sreg(buf, jt): return S0 + buf * 20 + jt * 4
def smfma(qt):
    buf = qt & 1
    L = []
    for u in range(4):
        for jt in range(5):
            c = v(sreg(buf, jt), 4) if u else "0"
            L.append(f"v_mfma_f32_16x16x32_bf16 {v(sreg(buf,jt),4)}, {a(kf(jt,u),4)}, {v(qf(qt,u),4)}, {c}")
    return L
def pf(qt, jt): return qf(qt, 0) + jt * 2
def merge(mf, va):
    out = []; n = len(mf)
    if n == 0: return list(va)
    per = len(va) / n
    vi = 0
    for k, m_ in enumerate(mf):
        out.append(m_)
        tgt = int(round((k + 1) * per))
        while vi < tgt and vi < len(va): out.append(va[vi]); vi += 1
    out += va[vi:]
    return out
def softmax(qt, mf):
    b = S0 + (qt & 1) * 20
    m, t1 = T0, T0 + 2
    P1 = []
    P1.append(f"v_max3_f32 v{m}, v{b}, v{b+1}, v{b+2}")
    P1.append(f"v_max3_f32 v{t1}, v{b+3}, v{b+4}, v{b+5}")
    k = 6; cur = [m, t1]
    while k + 1 < 20:
        r = cur[(k // 2) & 1]
        P1.append(f"v_max3_f32 v{r}, v{r}, v{b+k}, v{b+k+1}"); k += 2
    P1.append(f"v_max_f32 v{m}, v{m}, v{t1}")
    def xl(op, r):
        return [f"v_mov_b32 v{t1}, v{r}", "s_nop 1", f"v_permlane32_swap_b32 v{r}, v{t1}", f"{op} v{r}, v{r}, v{t1}",
                f"v_mov_b32 v{t1}, v{r}", "s_nop 1", f"v_permlane16_swap_b32 v{r}, v{t1}", f"{op} v{r}, v{r}, v{t1}"]
    P1 += xl("v_max_f32", m)
    P1.append(f"v_mul_f32 v{m}, s45, v{m}")
    P2 = [f"v_pk_fma_f32 {v(b+2*k,2)}, {v(b+2*k,2)}, s[44:45], {v(m,2)} op_sel_hi:[1,1,0] neg_lo:[0,0,1] neg_hi:[0,0,1]" for k in range(10)]
    P3 = [f"v_exp_f32 v{b+k}, v{b+k}" for k in range(20)]
    P4 = ["s_nop 0", f"v_pk_add_f32 {v(m,2)}, {v(b,2)}, {v(b+2,2)}"]
    for k in range(2, 10): P4.append(f"v_pk_add_f32 {v(m,2)}, {v(m,2)}, {v(b+2*k,2)}")
    P4.append(f"v_add_f32 v{m}, v{m}, v{m+1}")
    P4 += xl("v_add_f32", m)
    P4 += [f"v_rcp_f32 v{m}, v{m}", "s_nop 0"]
    P4 += [f"v_pk_mul_f32 {v(b+2*k,2)}, {v(b+2*k,2)}, {v(m,2)} op_sel_hi:[1,0]" for k in range(10)]
    P5 = [f"v_cvt_pk_bf16_f32 v{pf(qt,jt)+j}, v{b+jt*4+2*j}, v{b+jt*4+2*j+1}" for jt in range(5) for j in range(2)]
    n1 = min(8, len(mf))
    return merge(mf[:n1], P1) + P2 + merge(mf[n1:], P3) + P4 + P5
C1 += smfma(0)
C1.append("s_nop 6")
for qt in range(5):
    C1 += softmax(qt, smfma(qt + 1) if qt < 4 else [])
late = wgroups(16) + wgroups(17) + wgroups(18)
cut = int(len(C1) * opt["vfrac"] / 100)
A(sprinkle(C1[:cut], vq))
nw1 = opt["nw1"]
A(sprinkle(C1[cut:], late[:nw1]))
late = late[nw1:]
stamp()
A("v_lshrrev_b32 v16, 2, v1")
A("v_and_b32 v22, 7, v16")
A("v_lshlrev_b32 v22, 1, v22")
A("v_bfe_u32 v15, v1, 1, 1")
A("v_xor_b32 v22, v22, v15")
A("v_lshlrev_b32 v22, 4, v22")
A("v_lshl_add_u32 v22, v16, 8, v22")
A("v_and_b32 v15, 1, v1")
A("v_lshl_add_u32 v22, v15, 3, v22")
A("v_add_u32 v16, s3, v22")
A("v_add_u32 v21, 0x10000, v16")
A("v_add_u32 v17, s47, v14")
for vv in range(1, 4): A(f"v_xor_b32 v{17+vv}, {vv<<6}, v17")
A(WV("V"))
stamp()
def vf(T, jt): return T * 10 + jt * 2
def vreads(vv):
    L = []
    for T in (2 * vv, 2 * vv + 1):
        r = 15 if T & 1 else 22
        r2 = 0 if T & 1 else 23
        L.append(f"v_xor_b32 v{r}, {T<<5}, v16")
        L.append(f"v_xor_b32 v{r2}, {T<<5}, v21")
        for jt in range(4):
            off = f" offset:{jt*16384}" if jt else ""
            L.append(Ins(f"ds_read_b64_tr_b16 {a(vf(T,jt),2)}, v{r}{off}", lg=f"VF{vv}"))
        L.append(Ins(f"ds_read_b64_tr_b16 {a(vf(T,4),2)}, v{r2}", lg=f"VF{vv}"))
    return L
OA0 = 120; OO0 = 152
items = [(vv, qt) for vv in range(4) for qt in range(5)]
def pvm(n):
    vv, qt = items[n]; ob = OA0 + (n % 4) * 8
    L = []
    for m in range(3):
        for h in range(2):
            T = 2 * vv + h; d_ = v(ob + h * 4, 4)
            c = d_ if m else "0"
            if m < 2: L.append(f"v_mfma_f32_16x16x32_bf16 {d_}, {a(vf(T,2*m),4)}, {v(pf(qt,2*m),4)}, {c}")
            else: L.append(f"v_mfma_f32_16x16x16_bf16 {d_}, {a(vf(T,4),2)}, {v(pf(qt,4),2)}, {c}")
    return L
def pvo(n):
    vv, qt = items[n]; ob = OA0 + (n % 4) * 8; oo = OO0 + (n % 6) * 4
    L = [WL(f"OW{n-6}")] if n >= 6 else []
    L += [f"v_cvt_pk_bf16_f32 v{oo+j}, v{ob+2*j}, v{ob+2*j+1}" for j in range(4)]
    off = f" offset:{qt*4096}" if qt else ""
    L.append(Ins(f"ds_write_b128 v{17+vv}, {v(oo,4)}{off}", lg=f"OW{n}"))
    return L
A(vreads(0))
C2 = []
for n in range(20):
    vv, qt = items[n]
    fillers = []
    if n >= 2: fillers += pvo(n - 2)
    if qt in (0, 1) and vv < 3:
        vr = vreads(vv + 1); fillers += vr[:7] if qt == 0 else vr[7:]
    if qt == 0: C2.append(WL(f"VF{vv}"))
    C2 += merge(pvm(n), fillers)
C2 += pvo(18); C2.append("s_nop 2"); C2 += pvo(19)
A(sprinkle(C2, late))
for j in range(4):
    A(f"s_mul_i32 s{92+j}, s{84+j}, 20480"); A(f"s_add_u32 s{92+j}, s{92+j}, 81920")
A("s_lshl_b32 s38, s7, 3"); A("s_add_u32 s38, s38, s34")
A("s_lshl_b32 s38, s38, 2"); A("s_add_u32 s38, s38, s32"); A("s_mul_i32 s38, s38, 20480")
for qt in range(5): A(f"s_add_u32 s{70+qt}, s38, {qt*4096}")
A("v_lshlrev_b32 v22, 4, v1")
A("s_waitcnt lgkmcnt(0)")
A("s_barrier")
stamp()
class PDst:
    def __call__(self, d, qt, r): return QF0 + (d * 5 + qt) * 4 + r
    def after(self, d, qt):
        off = f" offset:{d*1024}" if d else ""
        return [Ins(f"buffer_store_dwordx4 {v(QF0+(d*5+qt)*4,4)}, v22, {R(SWS)}, s{70+qt} offen{off}" + pol("polS"), vm=f"ST{d}")]
TS = [3, 36, 44]
TO = [45, 46, 47]
setup = ["s_lshr_b32 s38, s34, 1",
         "s_and_b32 s39, s34, 1", "s_mul_i32 s39, s39, 10", "s_add_u32 s39, s39, s32",
         "s_lshl_b32 s40, s7, 5", "s_add_u32 s40, s40, s38", "s_mul_i32 s40, s40, 20480",
         "s_mul_i32 s41, s33, 163840", "s_lshl_b32 s4, s35, 10", "s_add_u32 s41, s41, s4", "s_lshl_b32 s4, s38, 8", "s_add_u32 s41, s41, s4"]
for j in range(3):
    setup += [f"s_add_u32 s4, s39, {4*j}", "s_lshr_b32 s5, s4, 2", "s_and_b32 s6, s4, 3",
              f"s_lshl_b32 s{TS[j]}, s5, 12", "s_lshl_b32 s4, s6, 8", f"s_add_u32 s{TS[j]}, s{TS[j]}, s4", f"s_add_u32 s{TS[j]}, s{TS[j]}, s40",
              f"s_lshl_b32 s{TO[j]}, s5, 15", "s_lshl_b32 s4, s6, 6", f"s_add_u32 s{TO[j]}, s{TO[j]}, s4", f"s_add_u32 s{TO[j]}, s{TO[j]}, s41"]
setup += [["s_cmp_lt_u32 s32, 2", f"s_cselect_b32 s{TS[2]}, s{TS[2]}, {OOB:#x}", f"s_cselect_b32 s{TO[2]}, s{TO[2]}, {OOB:#x}"],
          "v_lshlrev_b32 v4, 10, v3", "v_lshl_add_u32 v4, v2, 4, v4",
          "v_lshlrev_b32 v5, 11, v2", "v_lshl_add_u32 v5, v3, 4, v5",
          "v_and_b32 v6, 7, v1", "v_lshlrev_b32 v6, 2, v6",
          "s_lshl_b32 s100, s7, 2", "s_add_u32 s100, s100, s38", "s_lshl_b32 s100, s100, 7", f"s_add_u32 s100, s100, {FLAG_OFF:#x}",
          "s_lshl_b32 s101, s7, 3",
          "v_mov_b32 v16, 0", "v_mov_b32 v17, 1", "s_mov_b32 s40, 0x01010101", "s_mov_b32 s41, 0",
          Ins(f"buffer_load_dwordx2 v[8:9], v16, {R(SDBG)}, s101 offen sc1", vm="PC")]
extra2 = [[] for _ in range(16)]
per = (len(setup) + 7) // 8
for k in range(8):
    chunk = setup[k * per:(k + 1) * per]
    for c0 in range(0, len(chunk), 2):
        g_ = []
        for x in chunk[c0:c0 + 2]: g_ += x if isinstance(x, list) else [x]
        extra2[3 + k].append(g_)
tail2 = {opt.get("p0", 20): [WV("PC"), Ins(f"buffer_load_dword v10, v6, {R(SWS)}, s100 offen sc1", vm="PF0")]}
wl2 = {s_: [16 + s_ + 3] for s_ in range(16 - TL)}
left = gemm(16, extra2, wl2, {}, cvt_hook(PDst()), tail2)
stamp()
A("s_nop 7")
A(left)
A(WV("PF0"))
A("v_and_b32 v8, v8, v9")
A("v_cmp_eq_u32 vcc, s40, v8")
A("v_cmp_eq_u32 s[4:5], 1, v10")
A("s_and_b32 s38, vcc_lo, s4")
A("s_and_b32 s38, s38, 0xff")
def rreg(j, h2): return 24 + (j * 8 + h2) * 4
A(f"s_mov_b32 s37, {OOB:#x}")
def rloads(h2):
    A(f"s_bitcmp1_b32 s38, {h2}")
    A(f"s_cselect_b32 s39, {h2*81920}, s37")
    for j in range(3):
        A(f"s_add_u32 s{4+j}, s{TS[j]}, s39")
    for j in range(3):
        A(f"buffer_load_dwordx4 {v(rreg(j,h2),4)}, v4, {R(SWS)}, s{4+j} offen sc1", vm="RD")
if opt.get("tailmode", 1) == 0:
    for h2 in range(8): rloads(h2)
    A(WV("ST3"))
    A("s_mov_b64 exec, 1")
    A(f"buffer_store_dword v17, v16, {R(SWS)}, s75 offen sc1")
    A("s_mov_b64 exec, -1")
    stamp()
else:
    A(WV("ST3"))
    A("s_mov_b64 exec, 1")
    A(f"buffer_store_dword v17, v16, {R(SWS)}, s75 offen sc1")
    A("s_mov_b64 exec, -1")
    stamp()
    A("s_barrier")
    A("s_lshl_b32 s39, 1, s34"); A("s_or_b32 s38, s38, s39")
    for h2 in range(8): rloads(h2)
    A("s_cmp_eq_u32 s38, 0xff")
    A("s_cbranch_scc1 L_go")
A.label("L_poll0")
A("v_cmp_ne_u32 vcc, s40, v8")
A("s_cbranch_vccz L_poll1")
A("s_add_u32 s41, s41, 1"); A("s_cmp_gt_u32 s41, 0x40000"); A("s_cbranch_scc1 L_poll1")
A(f"buffer_load_dwordx2 v[8:9], v16, {R(SDBG)}, s101 offen sc1")
A("s_waitcnt vmcnt(0)")
A("v_and_b32 v8, v8, v9")
A("s_branch L_poll0")
A.label("L_poll1")
A(f"buffer_load_dword v10, v6, {R(SWS)}, s100 offen sc1")
A("s_add_u32 s41, s41, 1")
A("s_waitcnt vmcnt(0)")
A("v_cmp_eq_u32 vcc, 1, v10")
A("s_andn2_b32 s39, vcc_lo, s38")
A("s_and_b32 s39, s39, 0xff")
A("s_cbranch_scc0 L_pnext")
A("s_or_b32 s38, s38, s39")
for h2 in range(8):
    A(f"s_bitcmp1_b32 s39, {h2}")
    A(f"s_cbranch_scc0 L_skip{h2}")
    for j in range(3): A(f"s_add_u32 s{4+j}, s{TS[j]}, {h2*81920}")
    for j in range(3):
        A(f"buffer_load_dwordx4 {v(rreg(j,h2),4)}, v4, {R(SWS)}, s{4+j} offen sc1")
    A.label(f"L_skip{h2}")
A("s_cmp_eq_u32 s38, 0xff")
A("s_cbranch_scc1 L_go")
A.label("L_pnext")
if opt.get("slp"): A(f"s_sleep {opt['slp']}")
A("s_cmp_lt_u32 s41, 0x80000")
A("s_cbranch_scc1 L_poll1")
A.label("L_go")
stamp()
A("s_mov_b32 s4, 0xffff0000")
A("s_waitcnt vmcnt(0)")
for j in range(3):
    sb = 120 + j * 8
    for h2 in range(8):
        for r in range(4):
            src = rreg(j, h2) + r
            if h2 == 0:
                A(f"v_lshlrev_b32 v{sb+2*r}, 16, v{src}"); A(f"v_and_b32 v{sb+2*r+1}, s4, v{src}")
            else:
                tp = 144 + (r & 1) * 2
                A(f"v_lshlrev_b32 v{tp}, 16, v{src}"); A(f"v_and_b32 v{tp+1}, s4, v{src}")
                A(f"v_pk_add_f32 {v(sb+2*r,2)}, {v(sb+2*r,2)}, {v(tp,2)}")
    ob = 148 + j * 4
    for r in range(4): A(f"v_cvt_pk_bf16_f32 v{ob+r}, v{sb+2*r}, v{sb+2*r+1}")
    A("s_nop 1")
    A(f"v_permlane32_swap_b32 v{ob}, v{ob+2}"); A(f"v_permlane32_swap_b32 v{ob+1}, v{ob+3}")
    A("s_nop 1")
    A(f"v_permlane16_swap_b32 v{ob}, v{ob+1}"); A(f"v_permlane16_swap_b32 v{ob+2}, v{ob+3}")
    A(f"buffer_store_dwordx4 {v(ob,4)}, v5, {R(SOUT)}, s{TO[j]} offen" + pol("polO"))
if STAMPS:
    A("s_waitcnt vmcnt(0)")
    stamp()
    n = nst[0]
    assert n <= 11
    A("s_lshl_b32 s38, s2, 2"); A("s_add_u32 s38, s38, s32"); A(f"s_mul_i32 s38, s38, {n*8}"); A(f"s_add_u32 s38, s38, {200<<20}")
    for i in range(n):
        A(f"v_mov_b32 v{24+2*i}, s{sreg_st(i)}"); A(f"v_mov_b32 v{25+2*i}, s{sreg_st(i)+1}")
    A("v_mov_b32 v22, 0")
    A("s_mov_b64 exec, 1")
    for i in range(n):
        A(f"buffer_store_dwordx2 {v(24+2*i,2)}, v22, {R(SWS)}, s38 offen offset:{i*8}")
    sys.stderr.write(f"stamps per wave: {n}\n")
A.label("L_main_end")
A("s_endpgm")
A.label("L_code_end")
A.raw('.section .rodata,"a"')
A.raw(".p2align 6")
kernel_desc(A, KN, 512, 102, 256)
txt = A.text()
errs = check_hazards(txt)
for e in errs[:40]: sys.stderr.write("HAZARD " + e + "\n")
sys.stderr.write(f"{len(errs)} hazards, {len(txt)} bytes\n")
print(txt)
```

```python
import sys, re
from asmlib import *
src = open(sys.argv[1]).read(); n = int(sys.argv[2]); ea = sys.argv[3]; eb = sys.argv[4]
KN = "concat_heads__gqa_block_cached__gqa_block_cached__near_ridge_kernel"
L1 = "; @launch grid=(256,1,1) block=(256,1,1) lds=163840\n"
A = Asm()
kernel_header(A, "diag_kernel")
A("s_load_dwordx2 s[4:5], s[0:1], 96")
A("s_memrealtime s[10:11]")
A("s_cmp_lg_u32 s2, 0"); A("s_cbranch_scc1 L_diag_end")
A("s_mov_b32 s6, 0x10000000"); A("s_mov_b32 s7, 0x20000")
A("s_waitcnt lgkmcnt(0)")
A(f"v_mul_u32_u24 v1, {n*8}, v0")
def val(e, dst):
    if e == "now": A(f"s_mov_b32 s{dst}, 0"); return
    kind, idx = e[:3], int(e[3:])
    for k in range(16):
        A(f"s_mov_b32 s8, {(200<<20) + k*64*n*8 + idx*8}")
        A(f"buffer_load_dword v{8+k}, v1, s[4:7], s8 offen")
    A("s_waitcnt vmcnt(0)")
    op = "v_max_u32" if kind == "min" else "v_min_u32"
    for k in range(16): A(f"v_sub_u32 v{8+k}, s10, v{8+k}")
    for k in range(1, 16): A(f"{op} v8, v8, v{8+k}")
    A("s_nop 1")
    A(f"v_readlane_b32 s{dst}, v8, 0")
    for l in range(1, 64):
        A(f"v_readlane_b32 s9, v8, {l}")
        A(f"{'s_max_u32' if kind == 'min' else 's_min_u32'} s{dst}, s{dst}, s9")
val(ea, 12); val(eb, 13)
A("s_sub_u32 s12, s12, s13")
A("s_min_u32 s12, s12, 10000")
A("s_lshl_b32 s12, s12, 2")
A("s_add_u32 s12, s12, 500")
A.label("L_spin")
A("s_memrealtime s[14:15]")
A("s_waitcnt lgkmcnt(0)")
A("s_sub_u32 s16, s14, s10")
A("s_cmp_lt_u32 s16, s12")
A("s_cbranch_scc1 L_spin")
A.label("L_diag_end")
A("s_endpgm")
D = Asm(); D.raw(".p2align 6"); kernel_desc(D, "diag_kernel", 32, 24, 32)
out = src.replace(L1, f"; @launch kernel={KN} grid=(256,1,1) block=(256,1,1) lds=163840\n; @launch kernel=diag_kernel grid=(1,1,1) block=(64,1,1) lds=0\n")
out = out.replace('.section .rodata,"a"', A.text() + '.section .rodata,"a"')
out += D.text()
print(out)
```

```python
import sys, math, struct
from asmlib import *

opt = dict(stamps=0, polW="", polX="", polK="nt", polV="nt", polS="sc1", polO="sc1", vfrac=30, nw1=0, fine=0, cpf=1,
           sched="0:X1/3:X2/5:K6/7:X3/9:K7/11:K7/13:V8", spr=0)
for x in sys.argv[1:]:
    k, val = x.split("="); opt[k] = int(val) if val.lstrip("-").isdigit() else val.replace("+", " ")
STAMPS = opt["stamps"]
def pol(p): return (" " + opt[p]) if opt[p] else ""

KN = "concat_heads__gqa_block_cached__gqa_block_cached__near_ridge_kernel"
HDR = open("concat_heads__gqa_block_cached__gqa_block_cached__near_ridge.s.ref").read().split("\n")
A = Asm()
for l in HDR:
    if l.startswith("; Override") : break
    A.raw(l)
A.raw("; @launch grid=(256,1,1) block=(256,1,1) lds=163840")
A.raw('.amdgcn_target "amdgcn-amd-amdhsa--gfx950"')
A.raw(".text")
kernel_header(A, KN)

nst = [0]
def sreg_st(i): return 68 if i == 0 else 48 + 2 * (i - 1)
def stamp():
    if not STAMPS: return
    i = nst[0]; nst[0] += 1
    A(f"{'s_memtime' if STAMPS == 2 else 's_memrealtime'} s[{sreg_st(i)}:{sreg_st(i)+1}]")
    A("s_waitcnt lgkmcnt(0)")

SW1, SX, SWS, SK, SV, SW2, SDBG, SOUT = 8, 12, 16, 20, 24, 28, 76, 80
WSO = opt.get("wso", 0) << 20
FLAG_OFF = WSO + (22 << 20)
PW = 20480 + 256
OOB = 0x7f000000
def R(x): return f"s[{x}:{x+3}]"
stamp()
A("s_load_dwordx16 s[48:63], s[0:1], 0")
A("s_load_dwordx4 s[64:67], s[0:1], 64")
A("s_load_dwordx2 s[16:17], s[0:1], 96")
A("s_load_dwordx4 s[80:83], s[0:1], 80")
A("s_cmp_ge_u32 s2, 256"); A("s_cbranch_scc1 L_main_end")
A("s_lshr_b32 s38, s2, 3")
A("s_and_b32 s33, s38, 15")
if opt["cpf"]:
    A("s_getpc_b64 s[76:77]")
    A.label("L_pc")
    A(f"s_sub_u32 s76, s76, L_pc-{KN}"); A("s_subb_u32 s77, s77, 0")
    A(f"s_mov_b32 s78, L_code_end-{KN}"); A("s_mov_b32 s79, 0x20000")
    A("s_lshl_b32 s39, s33, 12")
    A("v_lshlrev_b32 v24, 4, v0")
    A("buffer_load_dwordx4 v[28:31], v24, s[76:79], s39 offen", vm="CPF")
A("s_lshr_b32 s38, s38, 4")
A("s_and_b32 s34, s2, 3")
A("s_lshl_b32 s34, s34, 1")
A("s_add_u32 s34, s34, s38")
A("s_bfe_u32 s35, s2, 0x10002")
A("v_lshrrev_b32 v22, 6, v0")
A("v_and_b32 v1, 63, v0")
A("v_and_b32 v2, 15, v0")
A("v_readfirstlane_b32 s32, v22")
A("v_lshrrev_b32 v3, 4, v1")
A("s_mov_b32 s42, 0x05040100"); A("s_mov_b32 s43, 0x07060302")
A("s_lshl_b32 s46, s34, 2"); A("s_add_u32 s46, s46, s32")
A("v_lshlrev_b32 v4, 16, v3")
A("v_lshl_add_u32 v4, v2, 4, v4")
A("s_lshl_b32 s38, s46, 8")
A("v_add_u32 v4, s38, v4")
for e in range(1, 8): A(f"v_add_u32 v{4+e}, {e*8192}, v4")
A("v_xor_b32 v23, v2, v3")
A("v_lshlrev_b32 v23, 4, v23")
A("v_lshl_add_u32 v0, v3, 10, v23")
A(f"s_and_b32 s39, s33, {opt.get('rotm', 12)}")
A("s_lshr_b32 s38, s39, 2")
for j in range(4):
    A(f"s_add_u32 s{84+j}, s38, {j}"); A(f"s_and_b32 s{84+j}, s{84+j}, 3")
    A(f"s_add_u32 s{88+j}, s39, {j}"); A(f"s_and_b32 s{88+j}, s{88+j}, 3")
A("s_mul_i32 s100, s33, 81920")
A("s_mul_i32 s39, s32, 20480")
A("s_add_u32 s100, s100, s39")
A("s_mul_i32 s101, s32, 5120")
for m in range(5):
    A(f"s_add_u32 s{70+m}, s32, {m}"); A(f"s_and_b32 s{70+m}, s{70+m}, 3"); A(f"s_lshl_b32 s{70+m}, s{70+m}, 6")
A("s_waitcnt lgkmcnt(0)")
A("s_cmp_eq_u32 s35, 0")
def srd(dst, pa, pb, size):
    A(f"s_cselect_b32 s{dst}, s{pa}, s{pb}"); A(f"s_cselect_b32 s{dst+1}, s{pa+1}, s{pb+1}")
    A(f"s_mov_b32 s{dst+2}, {size:#x}"); A(f"s_mov_b32 s{dst+3}, 0x20000")
srd(SW1, 54, 64, 0x400000)
srd(SX, 48, 58, 0x140000)
srd(SK, 50, 60, 0xa00000)
srd(SV, 52, 62, 0xa00000)
srd(SW2, 56, 66, 0x400000)

RING0, RING = 24, 4
AF0 = RING0 + RING * 32
TMP0 = AF0 + 12
QF0 = 176
BF0 = 160
def stage(step): return step % RING
def raw(st, e): return RING0 + st * 32 + e * 4
def acc(t, qt): return (qt * 8 + t) * 4
def bf(ls, qt): return BF0 + (ls % 3) * 20 + qt * 4

def wloads(step):
    st = stage(step); ls = step & 15
    L = [f"s_lshl_b32 s37, s{84+(ls>>2)}, 2", f"s_add_u32 s37, s37, s{88+(ls&3)}"]
    if step < 16:
        L.append("s_lshl_b32 s37, s37, 18")
        for e in range(8):
            L.append(Ins(f"buffer_load_dwordx4 {v(raw(st,e),4)}, v{4+e}, {R(SW1)}, s37 offen" + pol("polW"), vm=f"W{step}"))
    else:
        L.append("s_lshl_b32 s37, s37, 15")
        for e in range(8):
            off = f" offset:{(e&3)*1024}" if e & 3 else ""
            L.append(Ins(f"buffer_load_dwordx4 {v(raw(st,e),4)}, v{12+(e>>2)}, {R(SW2)}, s37 offen{off}" + pol("polW"), vm=f"W{step}"))
    return L
def wgroups(step):
    wl = wloads(step)
    return [wl[0:4]] + [[x] for x in wl[4:]]
def xdma_groups(j):
    G = []
    for m in range(5):
        pre = [f"s_lshl_b32 s40, s{84+j}, 8", "s_add_u32 s40, s40, s100"] if m == 0 else []
        G.append(pre + [f"v_xor_b32 v22, s{70+m}, v0", f"s_add_u32 m0, s101, {j*20480+m*1024}", f"s_add_u32 s5, s40, {m*4096}",
              Ins(f"buffer_load_dwordx4 v22, {R(SX)}, s5 offen" + pol("polX") + " lds", vm=f"X{j}")])
    return G
if opt.get("xfirst"):
    for g_ in xdma_groups(0): A(g_)
    A(wloads(0))
else:
    A(wloads(0))
    for g_ in xdma_groups(0): A(g_)
A(wloads(1))
A("s_mov_b32 s18, 0x10000000"); A("s_mov_b32 s19, 0x20000")
A("s_lshl_b32 s7, s35, 4"); A("s_add_u32 s7, s7, s33")
A("s_lshl_b32 s75, s7, 2"); A("s_add_u32 s75, s75, s32"); A("s_lshl_b32 s75, s75, 7")
A("s_lshl_b32 s38, s34, 2"); A("s_add_u32 s75, s75, s38"); A(f"s_add_u32 s75, s75, {FLAG_OFF:#x}")
A("v_mov_b32 v16, 0")
A("s_mov_b64 exec, 1")
A(f"buffer_store_dword v16, v16, {R(SWS)}, s75 offen sc1", vm="FCLR")
A("s_mov_b64 exec, -1")
A("s_mov_b32 s76, s82"); A("s_mov_b32 s77, s83"); A("s_mov_b32 s78, 256"); A("s_mov_b32 s79, 0x20000")
A("s_mov_b32 s82, 0x280000"); A("s_mov_b32 s83, 0x20000")
A("v_lshlrev_b32 v12, 12, v3")
A("v_lshl_add_u32 v12, v2, 4, v12")
A("s_lshl_b32 s38, s34, 19"); A("s_lshl_b32 s39, s32, 8"); A("s_add_u32 s38, s38, s39")
A("v_add_u32 v12, s38, v12")
A("v_add_u32 v13, 0x4000, v12")
A("v_lshl_add_u32 v14, v2, 8, v23")
for j in range(4):
    A(f"s_mov_b32 s{92+j}, {j*20480}"); A(f"s_lshl_b32 s{96+j}, s{88+j}, 6")
A("v_lshlrev_b32 v16, 2, v3")
A("v_xor_b32 v16, v16, v2")
A("v_lshlrev_b32 v16, 4, v16")
A("v_lshl_add_u32 v17, v3, 8, v16")
for mm in range(1, 4): A(f"v_xor_b32 v{17+mm}, {mm<<4}, v17")
A("v_lshlrev_b32 v16, 1, v3")
A("v_xor_b32 v16, v16, v2")
A("v_lshlrev_b32 v16, 4, v16")
A("v_lshl_add_u32 v21, v3, 8, v16")
A("v_xor_b32 v23, 128, v21")
A("s_lshl_b32 s36, s33, 5"); A("s_add_u32 s36, s36, s46"); A("s_mul_i32 s36, s36, 20480")
A("s_lshl_b32 s3, s32, 12")
A("s_mul_i32 s47, s32, 20480"); A("s_add_u32 s47, s47, 81920")
c_scale = (128 ** -0.5) * math.log2(math.e)
cbits = struct.unpack('<I', struct.pack('<f', c_scale))[0]
A(f"s_mov_b32 s44, {cbits:#x}"); A(f"s_mov_b32 s45, {cbits:#x}")

def kdma():
    L = []
    for grp in range(5):
        for mm in range(4):
            pre = [f"s_add_u32 m0, s47, {grp*4096}", f"s_add_u32 s4, s36, {grp*4096}"]
            off = f" offset:{mm*1024}" if mm else ""
            L.append(pre + [Ins(f"buffer_load_dwordx4 v{17+mm}, {R(SK)}, s4 offen{off}" + pol("polK") + " lds", vm="K")])
    return L
def vdma():
    L = []
    for grp in range(5):
        for mm in range(4):
            pre = [f"s_add_u32 m0, s3, {grp*16384}", f"s_add_u32 s6, s36, {grp*4096}"]
            off = f" offset:{mm*1024}" if mm else ""
            L.append(pre + [Ins(f"buffer_load_dwordx4 v{21 if (mm&1)==0 else 23}, {R(SV)}, s6 offen{off}" + pol("polV") + " lds", vm="V")])
    return L
def compact(groups):
    out = []; last = {}
    for g_ in groups:
        for x in g_:
            if isinstance(x, str) and x.startswith("s_add_u32 "):
                dst = x.split()[1]
                if last.get(dst) == x: continue
                last[dst] = x
            out.append(x)
    return out

def breads(ls, tag):
    L = [f"v_xor_b32 v15, s{96+(ls&3)}, v14", f"v_add_u32 v15, s{92+(ls>>2)}, v15"]
    for qt in range(5):
        off = f" offset:{qt*4096}" if qt else ""
        L.append(Ins(f"ds_read_b128 {a(bf(ls,qt),4)}, v15{off}", lg=tag))
    return L
def perms(step, t, buf):
    st = stage(step); d = t >> 1
    sel = "s42" if (t & 1) == 0 else "s43"
    return [f"v_perm_b32 v{AF0+buf*4+j}, v{raw(st,2*j+1)+d}, v{raw(st,2*j)+d}, {sel}" for j in range(4)]

TL = 3
def gemm(step0, extra, wl_of, pre_of, hook, tail_at):
    seq = [(ls, t) for ls in range(16 - TL) for t in range(8)] + [(ls, t) for t in range(8) for ls in range(16 - TL, 16)]
    A(breads(0, f"B{step0}"))
    A(WV(f"W{step0}"))
    A(WL("OW19"))
    A(perms(step0, 0, 0))
    A("s_nop 0")
    fill = [[[], [], []] for _ in seq]
    for ls in range(16 - TL):
        groups = []
        for ws_ in wl_of.get(ls, []): groups += wgroups(ws_)
        groups += list(extra[ls]) if extra else []
        brs = [ls + 1] if ls + 1 < 16 - TL else [ls + 1, ls + 2]
        brg = []
        for b_ in brs:
            br = breads(b_, f"B{step0+b_}")
            brg += [br[0:3]] + [[x] for x in br[3:]]
        base = ls * 8
        for k, g_ in enumerate(brg):
            fill[base + (k if len(brg) <= 8 else (k * 8) // len(brg))][2] += g_
        avail = [(t, c) for t in range(8) for c in (0, 1)]
        if len(groups) > 16: avail = sorted(avail + [(t, 2) for t in range(len(brg), 8)])
        if len(groups) <= 8: avail = [(t, 1) for t in range(8)]
        assert len(groups) <= len(avail), (ls, len(groups))
        for k, g_ in enumerate(groups): fill[base + avail[k][0]][avail[k][1]] += g_
    tb = (16 - TL) * 8
    br = breads(15, f"B{step0+15}")
    fill[tb][0] += br[0:4]; fill[tb][1] += br[4:6]; fill[tb][2] += br[6:]
    for d in range(3):
        ops = hook(d)
        slots = [(tb + (2 * d + 2) * TL + k // 3, k % 3) for k in range(2 * TL * 3)][1:]
        n = len(slots)
        for k, o in enumerate(ops):
            gi, c = slots[(k * n) // len(ops)]
            fill[gi][c].append(o)
    for gi, L_ in (tail_at or {}).items(): fill[tb + gi][2] += L_
    af = 0
    seen = set()
    for n_, (ls, t) in enumerate(seq):
        step = step0 + ls
        if ls not in seen:
            A(WL(f"B{step}")); seen.add(ls)
            A(pre_of.get(ls, []))
            if opt["fine"] and step0 == 0 and ls in (4, 8, 13): stamp()
        cs = lambda qt: (a(acc(t, qt), 4) if ls > 0 else "0")
        mf = [f"v_mfma_f32_16x16x32_bf16 {a(acc(t,qt),4)}, {v(AF0+af*4,4)}, {a(bf(ls,qt),4)}, {cs(qt)}" for qt in range(5)]
        naf = (af + 1) % 3
        if n_ + 1 < len(seq):
            nls, nt = seq[n_ + 1]
            assert A.issued.get(f"W{step0+nls}", 0) == 8, (step0, nls)
            pm = [WV(f"W{step0+nls}")] + perms(step0 + nls, nt, naf)
        else: pm = []
        f = fill[n_]
        A(mf[0]); A(pm[:3]); A(mf[1]); A(pm[3:]); A(mf[2]); A(f[0]); A(mf[3]); A(f[1]); A(mf[4]); A(f[2])
        af = naf
    return hook(3)

def qf(qt, u): return QF0 + (qt * 4 + u) * 4
def cvt_hook(dst):
    def h(d):
        L = []
        for qt in range(5):
            for half in range(2):
                tb_ = TMP0 + ((qt * 2 + half) % 3) * 4
                for rr in range(2):
                    r = half * 2 + rr
                    L.append(f"v_accvgpr_read_b32 v{tb_+2*rr}, a{acc(2*d,qt)+r}")
                    L.append(f"v_accvgpr_read_b32 v{tb_+2*rr+1}, a{acc(2*d+1,qt)+r}")
                for rr in range(2):
                    r = half * 2 + rr
                    L.append(f"v_cvt_pk_bf16_f32 v{dst(d,qt,r)}, v{tb_+2*rr}, v{tb_+2*rr+1}")
            L += dst.after(d, qt)
        return L
    return h
class QDst:
    def __call__(self, d, qt, r): return qf(qt, r) + d
    def after(self, d, qt): return []

A(WV("X0"))
A("s_barrier")
stamp()
kq = kdma(); vq = vdma()
extra = [[] for _ in range(16)]
pre1 = {3: [WV("X1"), "s_barrier"], 7: [WV("X2"), "s_barrier"], 11: [WV("X3"), "s_barrier"]}
nv_done = 0
for item in opt["sched"].split("/"):
    st_, what = item.split(":"); st_ = int(st_)
    G_ = []
    for w_ in what.split("."):
        n_ = int(w_[1:])
        if w_[0] == "X": G_ += xdma_groups(n_)
        elif w_[0] == "K": G_ += kq[:n_]; kq = kq[n_:]
        else:
            G_ += vq[:n_]; vq = vq[n_:]; nv_done += n_
            assert nv_done <= 4 * ((st_ + 1) // 4) and nv_done <= 12, "V piece would overwrite live x"
    if opt["spr"] and st_ < 16 - TL: extra[st_] += G_
    else: pre1[st_] = pre1.get(st_, []) + compact(G_)
assert not kq
wl1 = {}
nxt = 2
for s_ in range(16 - TL):
    wl1[s_] = []
    tgt = min(s_ + 3, 15)
    if nxt <= tgt: wl1[s_].append(nxt); nxt += 1
    if nxt <= tgt and s_ == 2: wl1[s_].append(nxt); nxt += 1
assert nxt == 16
def kf(jt, u):
    n = u * 5 + jt
    return 220 + n * 4 if n < 9 else 160 + (n - 9) * 4
kaddr = ["v_and_b32 v22, 3, v2", "v_xor_b32 v22, v22, v3", "v_lshlrev_b32 v22, 2, v22", "v_lshrrev_b32 v16, 2, v2", "v_or_b32 v22, v22, v16",
       "v_lshlrev_b32 v22, 4, v22", "v_lshl_add_u32 v22, v2, 8, v22", "v_add_u32 v17, s47, v22"] + [f"v_xor_b32 v{17+u}, {u<<4}, v17" for u in range(1, 4)]
kread = []
for u in range(4):
    for jt in range(5):
        off = f" offset:{jt*4096}" if jt else ""
        kread.append(Ins(f"ds_read_b128 {a(kf(jt,u),4)}, v{17+u}{off}", lg=f"KF{u}"))
assert A.issued.get("K", 0) == 0
tail1 = {1: kaddr[:4], 2: kaddr[4:8], 3: kaddr[8:], 19: [WV("K")] + kread[:2], 20: kread[2:4], 21: kread[4:6], 22: kread[6:8], 23: kread[8:9]}
left = gemm(0, extra, wl1, pre1, cvt_hook(QDst()), tail1)
stamp()
A("s_barrier")
A("s_lshl_b32 s38, s7, 3"); A("s_add_u32 s38, s38, s34")
A("s_cmp_eq_u32 s32, 0"); A("s_cselect_b32 s38, s38, 0x1000")
A("v_mov_b32 v16, 0"); A("v_mov_b32 v22, 1")
A("s_mov_b64 exec, 1")
CLRD = [Ins(f"buffer_store_byte v22, v16, {R(SDBG)}, s38 offen sc1", vm="CLRD")]
A(CLRD)
if opt.get("tlb", 0):
    A("s_lshl_b32 s38, s7, 2"); A("s_add_u32 s39, s38, s32"); A("s_lshl_b32 s39, s39, 3"); A("s_add_u32 s39, s39, s34"); A(f"s_mul_i32 s39, s39, {PW}")
    A(f"s_add_u32 s39, s39, {WSO+20480}")
    A(f"buffer_load_dword v4, v16, {R(SWS)}, s39 offen sc1 nt", vm="TLB")
    A("s_lshr_b32 s40, s34, 1"); A("s_add_u32 s38, s38, s40"); A(f"s_mul_i32 s38, s38, {8*PW}"); A(f"s_add_u32 s38, s38, {WSO+20480}")
    A("s_mul_i32 s39, s33, 163840"); A("s_and_b32 s41, s34, 1"); A("s_mul_i32 s41, s41, 65536+128"); A("s_add_u32 s39, s39, s41")
    A("s_lshl_b32 s41, s35, 10"); A("s_add_u32 s39, s39, s41"); A("s_lshl_b32 s41, s40, 8"); A("s_add_u32 s39, s39, s41")
    if opt.get("tlb", 0) == 2:
        A("s_mov_b64 exec, 0xff")
        A(f"v_mul_u32_u24 v5, {PW}, v1")
        A(f"buffer_load_dword v6, v5, {R(SWS)}, s38 offen sc1 nt", vm="TLB")
        A("s_mov_b64 exec, 7")
        A("v_lshlrev_b32 v5, 15, v1")
        A(f"buffer_load_dword v7, v5, {R(SOUT)}, s39 offen sc1 nt", vm="TLB")
    else:
        A(f"buffer_load_dword v6, v16, {R(SWS)}, s38 offen sc1 nt", vm="TLB")
        A(f"buffer_load_dword v7, v16, {R(SOUT)}, s39 offen sc1 nt", vm="TLB")
A("s_mov_b64 exec, -1")

def sprinkle(code, groups):
    if not groups: return list(code)
    out = []; n = len(code); gi = 0; m = len(groups)
    for i, c in enumerate(code):
        while gi < m and gi * n <= i * m:
            out += groups[gi]; gi += 1
        out.append(c)
    for g_ in groups[gi:]: out += g_
    return out

S0 = 124; T0 = 120
C1 = []
C1 += kread[9:]
def sreg(buf, jt): return S0 + buf * 20 + jt * 4
def smfma(qt):
    buf = qt & 1
    L = []
    for u in range(4):
        for jt in range(5):
            c = v(sreg(buf, jt), 4) if u else "0"
            L.append(f"v_mfma_f32_16x16x32_bf16 {v(sreg(buf,jt),4)}, {a(kf(jt,u),4)}, {v(qf(qt,u),4)}, {c}")
    return L
def pf(qt, jt): return qf(qt, 0) + jt * 2
def merge(mf, va):
    out = []; n = len(mf)
    if n == 0: return list(va)
    per = len(va) / n
    vi = 0
    for k, m_ in enumerate(mf):
        out.append(m_)
        tgt = int(round((k + 1) * per))
        while vi < tgt and vi < len(va): out.append(va[vi]); vi += 1
    out += va[vi:]
    return out
def softmax(qt, mf):
    b = S0 + (qt & 1) * 20
    m, t1 = T0, T0 + 2
    P1 = []
    P1.append(f"v_max3_f32 v{m}, v{b}, v{b+1}, v{b+2}")
    P1.append(f"v_max3_f32 v{t1}, v{b+3}, v{b+4}, v{b+5}")
    k = 6; cur = [m, t1]
    while k + 1 < 20:
        r = cur[(k // 2) & 1]
        P1.append(f"v_max3_f32 v{r}, v{r}, v{b+k}, v{b+k+1}"); k += 2
    P1.append(f"v_max_f32 v{m}, v{m}, v{t1}")
    def xl(op, r):
        return [f"v_mov_b32 v{t1}, v{r}", "s_nop 1", f"v_permlane32_swap_b32 v{r}, v{t1}", f"{op} v{r}, v{r}, v{t1}",
                f"v_mov_b32 v{t1}, v{r}", "s_nop 1", f"v_permlane16_swap_b32 v{r}, v{t1}", f"{op} v{r}, v{r}, v{t1}"]
    P1 += xl("v_max_f32", m)
    P1.append(f"v_mul_f32 v{m}, s45, v{m}")
    P2 = [f"v_pk_fma_f32 {v(b+2*k,2)}, {v(b+2*k,2)}, s[44:45], {v(m,2)} op_sel_hi:[1,1,0] neg_lo:[0,0,1] neg_hi:[0,0,1]" for k in range(10)]
    P3 = [f"v_exp_f32 v{b+k}, v{b+k}" for k in range(20)]
    P4 = ["s_nop 0", f"v_pk_add_f32 {v(m,2)}, {v(b,2)}, {v(b+2,2)}"]
    for k in range(2, 10): P4.append(f"v_pk_add_f32 {v(m,2)}, {v(m,2)}, {v(b+2*k,2)}")
    P4.append(f"v_add_f32 v{m}, v{m}, v{m+1}")
    P4 += xl("v_add_f32", m)
    P4 += [f"v_rcp_f32 v{m}, v{m}", "s_nop 0"]
    P4 += [f"v_pk_mul_f32 {v(b+2*k,2)}, {v(b+2*k,2)}, {v(m,2)} op_sel_hi:[1,0]" for k in range(10)]
    P5 = [f"v_cvt_pk_bf16_f32 v{pf(qt,jt)+j}, v{b+jt*4+2*j}, v{b+jt*4+2*j+1}" for jt in range(5) for j in range(2)]
    n1 = min(8, len(mf))
    return merge(mf[:n1], P1) + P2 + merge(mf[n1:], P3) + P4 + P5
s0 = smfma(0)
C1 += left[:12] + left[12:14]
rest = left[14:]
for u in range(4):
    C1.append(WL(f"KF{u}"))
    part = rest[u * 10:(u + 1) * 10] if u < 3 else rest[30:]
    C1 += merge(s0[u * 5:(u + 1) * 5], part)
def vf(T, jt): return T * 10 + jt * 2
def vreads(vv):
    L = []
    for T in (2 * vv, 2 * vv + 1):
        r = 15 if T & 1 else 22
        r2 = 0 if T & 1 else 23
        L.append(f"v_xor_b32 v{r}, {T<<5}, v16")
        L.append(f"v_xor_b32 v{r2}, {T<<5}, v21")
        for jt in range(4):
            off = f" offset:{jt*16384}" if jt else ""
            L.append(Ins(f"ds_read_b64_tr_b16 {a(vf(T,jt),2)}, v{r}{off}", lg=f"VF{vv}"))
        L.append(Ins(f"ds_read_b64_tr_b16 {a(vf(T,4),2)}, v{r2}", lg=f"VF{vv}"))
    return L
for qt in range(4):
    C1 += softmax(qt, smfma(qt + 1))
cut = int(len(C1) * opt["vfrac"] / 100)
A(sprinkle(C1[:cut], vq)); A(C1[cut:])
for j in range(4):
    A(f"s_add_u32 s{84+j}, s32, {j}"); A(f"s_and_b32 s{84+j}, s{84+j}, 3")
    A(f"s_add_u32 s{88+j}, s33, {j}"); A(f"s_and_b32 s{88+j}, s{88+j}, 3")
    A(f"s_mul_i32 s{92+j}, s{84+j}, 20480"); A(f"s_add_u32 s{92+j}, s{92+j}, 81920")
    A(f"s_lshl_b32 s{96+j}, s{88+j}, 6")
late = wgroups(16) + wgroups(17) + wgroups(18)
sm4 = softmax(4, [])
pvset = ["v_lshrrev_b32 v16, 2, v1", "v_and_b32 v22, 7, v16", "v_lshlrev_b32 v22, 1, v22", "v_bfe_u32 v15, v1, 1, 1", "v_xor_b32 v22, v22, v15",
         "v_lshlrev_b32 v22, 4, v22", "v_lshl_add_u32 v22, v16, 8, v22", "v_and_b32 v15, 1, v1", "v_lshl_add_u32 v22, v15, 3, v22",
         "v_add_u32 v16, s3, v22", "v_add_u32 v21, 0x10000, v16", "v_add_u32 v17, s47, v14"] + [f"v_xor_b32 v{17+vv}, {vv<<6}, v17" for vv in range(1, 4)]
ncut = len(sm4) - opt.get("vearly", 30)
A(pvset)
A(sm4[:ncut])
stamp()
A(WV("V"))
stamp()
A(vreads(0))
A(sm4[ncut:])
OA0 = 120; OO0 = 152
items = [(vv, qt) for vv in range(4) for qt in range(5)]
def pvm(n):
    vv, qt = items[n]; ob = OA0 + (n % 4) * 8
    L = []
    for m in range(3):
        for h in range(2):
            T = 2 * vv + h; d_ = v(ob + h * 4, 4)
            c = d_ if m else "0"
            if m < 2: L.append(f"v_mfma_f32_16x16x32_bf16 {d_}, {a(vf(T,2*m),4)}, {v(pf(qt,2*m),4)}, {c}")
            else: L.append(f"v_mfma_f32_16x16x16_bf16 {d_}, {a(vf(T,4),2)}, {v(pf(qt,4),2)}, {c}")
    return L
def pvo(n):
    vv, qt = items[n]; ob = OA0 + (n % 4) * 8; oo = OO0 + (n % 6) * 4
    L = [WL(f"OW{n-6}")] if n >= 6 else []
    L += [f"v_cvt_pk_bf16_f32 v{oo+j}, v{ob+2*j}, v{ob+2*j+1}" for j in range(4)]
    off = f" offset:{qt*4096}" if qt else ""
    L.append(Ins(f"ds_write_b128 v{17+vv}, {v(oo,4)}{off}", lg=f"OW{n}"))
    return L
C2 = ["s_nop 1"]
for n in range(20):
    vv, qt = items[n]
    fillers = []
    if n >= 2: fillers += pvo(n - 2)
    if qt in (0, 1) and vv < 3:
        vr = vreads(vv + 1); fillers += vr[:7] if qt == 0 else vr[7:]
    if qt == 0: C2.append(WL(f"VF{vv}"))
    C2 += merge(pvm(n), fillers)
C2 += pvo(18); C2.append("s_nop 2"); C2 += pvo(19)
A(sprinkle(C2, late))
stamp()
class PDst:
    def __call__(self, d, qt, r): return QF0 + (d * 5 + qt) * 4 + r
    def after(self, d, qt):
        off = f" offset:{d*1024}" if d else ""
        return [Ins(f"buffer_store_dwordx4 {v(QF0+(d*5+qt)*4,4)}, v22, {R(SWS)}, s{70+qt} offen{off}" + pol("polS"), vm=f"ST{d}")]
TS = [3, 36, 44]
TO = [45, 46, 47]
setup = ["s_lshl_b32 s38, s7, 2", "s_add_u32 s38, s38, s32", "s_lshl_b32 s38, s38, 3", "s_add_u32 s38, s38, s34", f"s_mul_i32 s38, s38, {PW}"]
setup += [f"s_add_u32 s{70+qt}, s38, {WSO+qt*4096}" for qt in range(5)] + ["v_lshlrev_b32 v22, 4, v1"]
setup += ["s_lshr_b32 s38, s34, 1",
         "s_and_b32 s39, s34, 1", "s_mul_i32 s39, s39, 10", "s_add_u32 s39, s39, s32",
         "s_lshl_b32 s40, s7, 2", "s_add_u32 s40, s40, s38", f"s_mul_i32 s40, s40, {8*PW}", f"s_add_u32 s40, s40, {WSO}",
         "s_mul_i32 s41, s33, 163840", "s_lshl_b32 s4, s35, 10", "s_add_u32 s41, s41, s4", "s_lshl_b32 s4, s38, 8", "s_add_u32 s41, s41, s4"]
for j in range(3):
    setup += [f"s_add_u32 s4, s39, {4*j}", "s_lshr_b32 s5, s4, 2", "s_and_b32 s6, s4, 3",
              f"s_lshl_b32 s{TS[j]}, s5, 12", "s_lshl_b32 s4, s6, 8", f"s_add_u32 s{TS[j]}, s{TS[j]}, s4", f"s_add_u32 s{TS[j]}, s{TS[j]}, s40",
              f"s_lshl_b32 s{TO[j]}, s5, 15", "s_lshl_b32 s4, s6, 6", f"s_add_u32 s{TO[j]}, s{TO[j]}, s4", f"s_add_u32 s{TO[j]}, s{TO[j]}, s41"]
setup += [["s_cmp_lt_u32 s32, 2", f"s_cselect_b32 s{TS[2]}, s{TS[2]}, {OOB:#x}", f"s_cselect_b32 s{TO[2]}, s{TO[2]}, {OOB:#x}"],
          "v_lshlrev_b32 v4, 10, v3", "v_lshl_add_u32 v4, v2, 4, v4",
          "v_lshlrev_b32 v5, 11, v2", "v_lshl_add_u32 v5, v3, 4, v5",
          "v_and_b32 v6, 7, v1", "v_lshlrev_b32 v6, 2, v6",
          "s_lshl_b32 s100, s7, 2", "s_add_u32 s100, s100, s38", "s_lshl_b32 s100, s100, 7", f"s_add_u32 s100, s100, {FLAG_OFF:#x}",
          "s_lshl_b32 s101, s7, 3",
          "v_mov_b32 v16, 0", "v_mov_b32 v17, 1", "s_mov_b32 s40, 0x01010101", "s_mov_b32 s41, 0",
          Ins(f"buffer_load_dwordx2 v[8:9], v16, {R(SDBG)}, s101 offen sc1", vm="PC")]
extra2 = [[] for _ in range(16)]
per = (len(setup) + 7) // 8
for k in range(8):
    chunk = setup[k * per:(k + 1) * per]
    for c0 in range(0, len(chunk), 2):
        g_ = []
        for x in chunk[c0:c0 + 2]: g_ += x if isinstance(x, list) else [x]
        extra2[3 + k].append(g_)
tail2 = {opt.get("p0", 20): [WV("PC"), Ins(f"buffer_load_dword v10, v6, {R(SWS)}, s100 offen sc1", vm="PF0")]}
wl2 = {s_: [16 + s_ + 3] for s_ in range(16 - TL)}
left = gemm(16, extra2, wl2, {3: ["s_barrier"]}, cvt_hook(PDst()), tail2)
stamp()
A("s_nop 7")
A(left)
A(WV("PF0"))
A("v_and_b32 v8, v8, v9")
A("v_cmp_eq_u32 vcc, s40, v8")
A("v_cmp_eq_u32 s[4:5], 1, v10")
A("s_and_b32 s38, vcc_lo, s4")
A("s_and_b32 s38, s38, 0xff")
def rreg(j, h2): return 24 + (j * 8 + h2) * 4
A(f"s_mov_b32 s37, {OOB:#x}")
def rloads(h2):
    A(f"s_bitcmp1_b32 s38, {h2}")
    A(f"s_cselect_b32 s39, {h2*PW}, s37")
    for j in range(3):
        A(f"s_add_u32 s{4+j}, s{TS[j]}, s39")
    for j in range(3):
        A(f"buffer_load_dwordx4 {v(rreg(j,h2),4)}, v4, {R(SWS)}, s{4+j} offen " + opt.get("polR", "sc1 nt"), vm="RD")
if opt.get("tailmode", 1) == 0:
    for h2 in range(8): rloads(h2)
    A(WV("ST3"))
    A("s_mov_b64 exec, 1")
    A(f"buffer_store_dword v17, v16, {R(SWS)}, s75 offen sc1")
    A("s_mov_b64 exec, -1")
    stamp()
else:
    A(WV("ST3"))
    A("s_mov_b64 exec, 1")
    A(f"buffer_store_dword v17, v16, {R(SWS)}, s75 offen sc1")
    A("s_mov_b64 exec, -1")
    stamp()
    A("s_barrier")
    A("s_lshl_b32 s39, 1, s34"); A("s_or_b32 s38, s38, s39")
    for h2 in range(8): rloads(h2)
    A("s_cmp_eq_u32 s38, 0xff")
    A("s_cbranch_scc1 L_go")
A.label("L_poll0")
A("v_cmp_ne_u32 vcc, s40, v8")
A("s_cbranch_vccz L_poll1")
A("s_add_u32 s41, s41, 1"); A("s_cmp_gt_u32 s41, 0x40000"); A("s_cbranch_scc1 L_poll1")
A(f"buffer_load_dwordx2 v[8:9], v16, {R(SDBG)}, s101 offen sc1")
A("s_waitcnt vmcnt(0)")
A("v_and_b32 v8, v8, v9")
A("s_branch L_poll0")
A.label("L_poll1")
A(f"buffer_load_dword v10, v6, {R(SWS)}, s100 offen sc1")
A("s_add_u32 s41, s41, 1")
A("s_waitcnt vmcnt(0)")
A("v_cmp_eq_u32 vcc, 1, v10")
A("s_andn2_b32 s39, vcc_lo, s38")
A("s_and_b32 s39, s39, 0xff")
A("s_cbranch_scc0 L_pnext")
A("s_or_b32 s38, s38, s39")
for h2 in range(8):
    A(f"s_bitcmp1_b32 s39, {h2}")
    A(f"s_cbranch_scc0 L_skip{h2}")
    for j in range(3): A(f"s_add_u32 s{4+j}, s{TS[j]}, {h2*PW}")
    for j in range(3):
        A(f"buffer_load_dwordx4 {v(rreg(j,h2),4)}, v4, {R(SWS)}, s{4+j} offen " + opt.get("polR", "sc1 nt"))
    A.label(f"L_skip{h2}")
A("s_cmp_eq_u32 s38, 0xff")
A("s_cbranch_scc1 L_go")
A.label("L_pnext")
if opt.get("slp"): A(f"s_sleep {opt['slp']}")
A("s_cmp_lt_u32 s41, 0x80000")
A("s_cbranch_scc1 L_poll1")
A.label("L_go")
stamp()
A("s_mov_b32 s4, 0xffff0000")
A("s_waitcnt vmcnt(0)")
for j in range(3):
    sb = 120 + j * 8
    for h2 in range(8):
        for r in range(4):
            src = rreg(j, h2) + r
            if h2 == 0:
                A(f"v_lshlrev_b32 v{sb+2*r}, 16, v{src}"); A(f"v_and_b32 v{sb+2*r+1}, s4, v{src}")
            else:
                tp = 144 + (r & 1) * 2
                A(f"v_lshlrev_b32 v{tp}, 16, v{src}"); A(f"v_and_b32 v{tp+1}, s4, v{src}")
                A(f"v_pk_add_f32 {v(sb+2*r,2)}, {v(sb+2*r,2)}, {v(tp,2)}")
    ob = 148 + j * 4
    for r in range(4): A(f"v_cvt_pk_bf16_f32 v{ob+r}, v{sb+2*r}, v{sb+2*r+1}")
    A("s_nop 1")
    A(f"v_permlane32_swap_b32 v{ob}, v{ob+2}"); A(f"v_permlane32_swap_b32 v{ob+1}, v{ob+3}")
    A("s_nop 1")
    A(f"v_permlane16_swap_b32 v{ob}, v{ob+1}"); A(f"v_permlane16_swap_b32 v{ob+2}, v{ob+3}")
    A(f"buffer_store_dwordx4 {v(ob,4)}, v5, {R(SOUT)}, s{TO[j]} offen" + pol("polO"))
if STAMPS:
    A("s_waitcnt vmcnt(0)")
    stamp()
    n = nst[0]
    assert n <= 11
    A("s_lshl_b32 s38, s2, 2"); A("s_add_u32 s38, s38, s32"); A(f"s_mul_i32 s38, s38, {n*8}"); A(f"s_add_u32 s38, s38, {200<<20}")
    for i in range(n):
        A(f"v_mov_b32 v{24+2*i}, s{sreg_st(i)}"); A(f"v_mov_b32 v{25+2*i}, s{sreg_st(i)+1}")
    A("v_mov_b32 v22, 0")
    A("s_mov_b64 exec, 1")
    for i in range(n):
        A(f"buffer_store_dwordx2 {v(24+2*i,2)}, v22, {R(SWS)}, s38 offen offset:{i*8}")
    sys.stderr.write(f"stamps per wave: {n}\n")
A.label("L_main_end")
A("s_endpgm")
A.label("L_code_end")
A.raw('.section .rodata,"a"')
A.raw(".p2align 6")
kernel_desc(A, KN, 512, 102, 256)
txt = A.text()
errs = check_hazards(txt)
for e in errs[:40]: sys.stderr.write("HAZARD " + e + "\n")
sys.stderr.write(f"{len(errs)} hazards, {len(txt)} bytes\n")
print(txt)
```

```python
import sys, math, struct
from asmlib import *

opt = dict(stamps=0, polW="", polX="", polK="nt", polV="nt", polS="sc1", polO="sc1", vfrac=30, nw1=0, fine=0, cpf=1,
           sched="0:X1/3:X2/5:K6/7:X3/9:K7/11:K7/13:V12", spr=0)
for x in sys.argv[1:]:
    k, val = x.split("="); opt[k] = int(val) if val.lstrip("-").isdigit() else val.replace("+", " ")
STAMPS = opt["stamps"]
def pol(p): return (" " + opt[p]) if opt[p] else ""

KN = "concat_heads__gqa_block_cached__gqa_block_cached__near_ridge_kernel"
HDR = open("concat_heads__gqa_block_cached__gqa_block_cached__near_ridge.s.ref").read().split("\n")
A = Asm()
for l in HDR:
    if l.startswith("; Override") : break
    A.raw(l)
A.raw("; @launch grid=(256,1,1) block=(256,1,1) lds=163840")
A.raw('.amdgcn_target "amdgcn-amd-amdhsa--gfx950"')
A.raw(".text")
kernel_header(A, KN)

nst = [0]
def sreg_st(i): return 68 if i == 0 else 48 + 2 * (i - 1)
def stamp():
    if not STAMPS: return
    i = nst[0]; nst[0] += 1
    A(f"{'s_memtime' if STAMPS == 2 else 's_memrealtime'} s[{sreg_st(i)}:{sreg_st(i)+1}]")
    A("s_waitcnt lgkmcnt(0)")

SW1, SX, SWS, SK, SV, SW2, SDBG, SOUT = 8, 12, 16, 20, 24, 28, 76, 80
WSO = opt.get("wso", 0) << 20
FLAG_OFF = WSO + (22 << 20)
PW = 20480 + 256
OOB = 0x7f000000
def R(x): return f"s[{x}:{x+3}]"
stamp()
A("s_load_dwordx16 s[48:63], s[0:1], 0")
A("s_load_dwordx4 s[64:67], s[0:1], 64")
A("s_load_dwordx2 s[16:17], s[0:1], 96")
A("s_load_dwordx4 s[80:83], s[0:1], 80")
A("s_cmp_ge_u32 s2, 256"); A("s_cbranch_scc1 L_main_end")
A("s_lshr_b32 s38, s2, 3")
A("s_and_b32 s33, s38, 15")
if opt["cpf"]:
    A("s_getpc_b64 s[76:77]")
    A.label("L_pc")
    A(f"s_sub_u32 s76, s76, L_pc-{KN}"); A("s_subb_u32 s77, s77, 0")
    A(f"s_mov_b32 s78, L_code_end-{KN}"); A("s_mov_b32 s79, 0x20000")
    A("s_lshl_b32 s39, s33, 12")
    A("v_lshlrev_b32 v24, 4, v0")
    A("buffer_load_dwordx4 v[28:31], v24, s[76:79], s39 offen", vm="CPF")
A("s_lshr_b32 s38, s38, 4")
A("s_and_b32 s34, s2, 3")
A("s_lshl_b32 s34, s34, 1")
A("s_add_u32 s34, s34, s38")
A("s_bfe_u32 s35, s2, 0x10002")
A("v_lshrrev_b32 v22, 6, v0")
A("v_and_b32 v1, 63, v0")
A("v_and_b32 v2, 15, v0")
A("v_readfirstlane_b32 s32, v22")
A("v_lshrrev_b32 v3, 4, v1")
A("s_mov_b32 s42, 0x05040100"); A("s_mov_b32 s43, 0x07060302")
A("s_lshl_b32 s46, s34, 2"); A("s_add_u32 s46, s46, s32")
A("v_lshlrev_b32 v4, 16, v3")
A("v_lshl_add_u32 v4, v2, 4, v4")
A("s_lshl_b32 s38, s46, 8")
A("v_add_u32 v4, s38, v4")
for e in range(1, 8): A(f"v_add_u32 v{4+e}, {e*8192}, v4")
A("v_xor_b32 v23, v2, v3")
A("v_lshlrev_b32 v23, 4, v23")
A("v_lshl_add_u32 v0, v3, 10, v23")
A(f"s_and_b32 s39, s33, {opt.get('rotm', 12)}")
A("s_lshr_b32 s38, s39, 2")
for j in range(4):
    A(f"s_add_u32 s{84+j}, s38, {j}"); A(f"s_and_b32 s{84+j}, s{84+j}, 3")
    A(f"s_add_u32 s{88+j}, s39, {j}"); A(f"s_and_b32 s{88+j}, s{88+j}, 3")
A("s_mul_i32 s100, s33, 81920")
A("s_mul_i32 s39, s32, 20480")
A("s_add_u32 s100, s100, s39")
A("s_mul_i32 s101, s32, 5120")
for m in range(5):
    A(f"s_add_u32 s{70+m}, s32, {m}"); A(f"s_and_b32 s{70+m}, s{70+m}, 3"); A(f"s_lshl_b32 s{70+m}, s{70+m}, 6")
A("s_waitcnt lgkmcnt(0)")
A("s_cmp_eq_u32 s35, 0")
def srd(dst, pa, pb, size):
    A(f"s_cselect_b32 s{dst}, s{pa}, s{pb}"); A(f"s_cselect_b32 s{dst+1}, s{pa+1}, s{pb+1}")
    A(f"s_mov_b32 s{dst+2}, {size:#x}"); A(f"s_mov_b32 s{dst+3}, 0x20000")
srd(SW1, 54, 64, 0x400000)
srd(SX, 48, 58, 0x140000)
srd(SK, 50, 60, 0xa00000)
srd(SV, 52, 62, 0xa00000)
srd(SW2, 56, 66, 0x400000)

RING0, RING = 24, 4
AF0 = RING0 + RING * 32
TMP0 = AF0 + 12
QF0 = 176
BF0 = 160
TL2 = opt.get("tl2", 4)
STG = [24, 56, 88, 120, 200]
def stage(step): return step % 4 if step < 16 else (step - 16) % 5
def raw(st, e): return STG[st] + e * 4
def acc(t, qt): return (qt * 8 + t) * 4
def bf(step, qt):
    nb = 3 if step < 16 else max(3, TL2)
    n = ((step & 15) % nb) * 5 + qt
    return a(BF0 + n * 4, 4) if n < 24 else v(248, 4)

def wloads(step):
    st = stage(step); ls = step & 15
    L = [f"s_lshl_b32 s37, s{84+(ls>>2)}, 2", f"s_add_u32 s37, s37, s{88+(ls&3)}"]
    if step < 16:
        L.append("s_lshl_b32 s37, s37, 18")
        for e in range(8):
            L.append(Ins(f"buffer_load_dwordx4 {v(raw(st,e),4)}, v{4+e}, {R(SW1)}, s37 offen" + pol("polW"), vm=f"W{step}"))
    else:
        L.append("s_lshl_b32 s37, s37, 15")
        for e in range(8):
            off = f" offset:{(e&3)*1024}" if e & 3 else ""
            L.append(Ins(f"buffer_load_dwordx4 {v(raw(st,e),4)}, v{12+(e>>2)}, {R(SW2)}, s37 offen{off}" + pol("polW"), vm=f"W{step}"))
    return L
def wgroups(step):
    wl = wloads(step)
    return [wl[0:4]] + [[x] for x in wl[4:]]
def xdma_groups(j):
    G = []
    for m in range(5):
        pre = [f"s_lshl_b32 s40, s{84+j}, 8", "s_add_u32 s40, s40, s100"] if m == 0 else []
        G.append(pre + [f"v_xor_b32 v22, s{70+m}, v0", f"s_add_u32 m0, s101, {j*20480+m*1024}", f"s_add_u32 s5, s40, {m*4096}",
              Ins(f"buffer_load_dwordx4 v22, {R(SX)}, s5 offen" + pol("polX") + " lds", vm=f"X{j}")])
    return G
if opt.get("xfirst"):
    for g_ in xdma_groups(0): A(g_)
    A(wloads(0))
else:
    A(wloads(0))
    for g_ in xdma_groups(0): A(g_)
A(wloads(1))
A("s_mov_b32 s18, 0x10000000"); A("s_mov_b32 s19, 0x20000")
A("s_lshl_b32 s7, s35, 4"); A("s_add_u32 s7, s7, s33")
A("s_lshl_b32 s75, s7, 2"); A("s_add_u32 s75, s75, s32"); A("s_lshl_b32 s75, s75, 7")
A("s_lshl_b32 s38, s34, 2"); A("s_add_u32 s75, s75, s38"); A(f"s_add_u32 s75, s75, {FLAG_OFF:#x}")
A("v_mov_b32 v16, 0")
A("s_mov_b64 exec, 1")
A(f"buffer_store_dword v16, v16, {R(SWS)}, s75 offen sc1", vm="FCLR")
A("s_mov_b64 exec, -1")
A("s_mov_b32 s76, s82"); A("s_mov_b32 s77, s83"); A("s_mov_b32 s78, 256"); A("s_mov_b32 s79, 0x20000")
A("s_mov_b32 s82, 0x280000"); A("s_mov_b32 s83, 0x20000")
A("v_lshlrev_b32 v12, 12, v3")
A("v_lshl_add_u32 v12, v2, 4, v12")
A("s_lshl_b32 s38, s34, 19"); A("s_lshl_b32 s39, s32, 8"); A("s_add_u32 s38, s38, s39")
A("v_add_u32 v12, s38, v12")
A("v_add_u32 v13, 0x4000, v12")
A("v_lshl_add_u32 v14, v2, 8, v23")
for j in range(4):
    A(f"s_mov_b32 s{92+j}, {j*20480}"); A(f"s_lshl_b32 s{96+j}, s{88+j}, 6")
A("v_lshlrev_b32 v16, 2, v3")
A("v_xor_b32 v16, v16, v2")
A("v_lshlrev_b32 v16, 4, v16")
A("v_lshl_add_u32 v17, v3, 8, v16")
for mm in range(1, 4): A(f"v_xor_b32 v{17+mm}, {mm<<4}, v17")
A("v_lshlrev_b32 v16, 1, v3")
A("v_xor_b32 v16, v16, v2")
A("v_lshlrev_b32 v16, 4, v16")
A("v_lshl_add_u32 v21, v3, 8, v16")
A("v_xor_b32 v23, 128, v21")
A("s_lshl_b32 s36, s33, 5"); A("s_add_u32 s36, s36, s46"); A("s_mul_i32 s36, s36, 20480")
A("s_lshl_b32 s3, s32, 12")
A("s_mul_i32 s47, s32, 20480"); A("s_add_u32 s47, s47, 81920")
c_scale = (128 ** -0.5) * math.log2(math.e)
cbits = struct.unpack('<I', struct.pack('<f', c_scale))[0]
A(f"s_mov_b32 s44, {cbits:#x}"); A(f"s_mov_b32 s45, {cbits:#x}")

def kdma():
    L = []
    for grp in range(5):
        for mm in range(4):
            pre = [f"s_add_u32 m0, s47, {grp*4096}", f"s_add_u32 s4, s36, {grp*4096}"]
            off = f" offset:{mm*1024}" if mm else ""
            L.append(pre + [Ins(f"buffer_load_dwordx4 v{17+mm}, {R(SK)}, s4 offen{off}" + pol("polK") + " lds", vm="K")])
    return L
def vdma():
    L = []
    for grp in range(5):
        for mm in range(4):
            pre = [f"s_add_u32 m0, s3, {grp*16384}", f"s_add_u32 s6, s36, {grp*4096}"]
            off = f" offset:{mm*1024}" if mm else ""
            L.append(pre + [Ins(f"buffer_load_dwordx4 v{21 if (mm&1)==0 else 23}, {R(SV)}, s6 offen{off}" + pol("polV") + " lds", vm="V")])
    return L
def compact(groups):
    out = []; last = {}
    for g_ in groups:
        for x in g_:
            if isinstance(x, str) and x.startswith("s_add_u32 "):
                dst = x.split()[1]
                if last.get(dst) == x: continue
                last[dst] = x
            out.append(x)
    return out

def breads(step):
    ls = step & 15
    L = [f"v_xor_b32 v15, s{96+(ls&3)}, v14", f"v_add_u32 v15, s{92+(ls>>2)}, v15"]
    for qt in range(5):
        off = f" offset:{qt*4096}" if qt else ""
        L.append(Ins(f"ds_read_b128 {bf(step,qt)}, v15{off}", lg=f"B{step}"))
    return L
def perms(step, t, buf):
    st = stage(step); d = t >> 1
    sel = "s42" if (t & 1) == 0 else "s43"
    return [f"v_perm_b32 v{AF0+buf*4+j}, v{raw(st,2*j+1)+d}, v{raw(st,2*j)+d}, {sel}" for j in range(4)]

TL = 3
def gemm(step0, TL, extra, wl_of, pre_of, hook, tail_at, late_w=False):
    NB = max(3, TL)
    tl = list(range(16 - TL, 16))
    seq = [(ls, t) for ls in range(16 - TL) for t in range(8)]
    if late_w: seq += [(ls, 0) for ls in tl[:-1]] + [(ls, 1) for ls in tl[:-1]] + [(15, 0), (15, 1)]
    else: seq += [(ls, t) for t in range(2) for ls in tl]
    seq += [(ls, t) for t in range(2, 8) for ls in tl]
    A(breads(step0))
    A(WV(f"W{step0}"))
    A(WL("OW19"))
    A(perms(step0, 0, 0))
    A("s_nop 0")
    fill = [[[], [], []] for _ in seq]
    nb = 1
    for ls in range(16 - TL):
        groups = []
        for ws_ in wl_of.get(ls, []): groups += wgroups(ws_)
        groups += list(extra[ls]) if extra else []
        cnt = 2 if ls >= 16 - TL - (TL - 2) else 1
        brg = []
        for _ in range(cnt):
            assert nb - NB + 1 <= ls
            br = breads(step0 + nb); nb += 1
            brg += [br[0:3]] + [[x] for x in br[3:]]
        base = ls * 8
        for k, g_ in enumerate(brg):
            fill[base + (k if len(brg) <= 8 else (k * 8) // len(brg))][2] += g_
        avail = [(t, c) for t in range(8) for c in (0, 1)]
        if len(groups) > 16: avail = sorted(avail + [(t, 2) for t in range(len(brg), 8)])
        if len(groups) <= 8: avail = [(t, 1) for t in range(8)]
        assert len(groups) <= len(avail), (ls, len(groups))
        for k, g_ in enumerate(groups): fill[base + avail[k][0]][avail[k][1]] += g_
    assert nb == 15
    tb = (16 - TL) * 8
    br = breads(step0 + 15)
    fill[tb][0] += br[0:4]; fill[tb][1] += br[4:6]; fill[tb][2] += br[6:]
    if late_w:
        for k, g_ in enumerate(wgroups(step0 + 15)): fill[tb + k // 3][k % 3] += g_
    for d in range(3):
        ops = hook(d)
        slots = [(tb + (2 * d + 2) * TL + k // 3, k % 3) for k in range(2 * TL * 3)][1:]
        if opt.get("hfast") and step0: slots = slots[:(len(ops) + 1) // 2] if len(slots) > (len(ops) + 1) // 2 else slots
        n = len(slots)
        for k, o in enumerate(ops):
            gi, c = slots[(k * n) // len(ops)]
            fill[gi][c].append(o)
    for gi, L_ in (tail_at or {}).items(): fill[tb + gi][2] += L_
    af = 0
    seen = set()
    for n_, (ls, t) in enumerate(seq):
        step = step0 + ls
        if ls not in seen:
            A(WL(f"B{step}")); seen.add(ls)
            A(pre_of.get(ls, []))
            if opt["fine"] and step0 == 0 and ls in (4, 8, 13): stamp()
        cs = lambda qt: (a(acc(t, qt), 4) if ls > 0 else "0")
        mf = [f"v_mfma_f32_16x16x32_bf16 {a(acc(t,qt),4)}, {v(AF0+af*4,4)}, {bf(step,qt)}, {cs(qt)}" for qt in range(5)]
        naf = (af + 1) % 3
        if n_ + 1 < len(seq):
            nls, nt = seq[n_ + 1]
            assert A.issued.get(f"W{step0+nls}", 0) == 8, (step0, nls)
            pm = [WV(f"W{step0+nls}")] + perms(step0 + nls, nt, naf)
        else: pm = []
        f = fill[n_]
        A(mf[0]); A(pm[:3]); A(mf[1]); A(pm[3:]); A(mf[2]); A(f[0]); A(mf[3]); A(f[1]); A(mf[4]); A(f[2])
        af = naf
    return hook(3)

def qf(qt, u): return QF0 + (qt * 4 + u) * 4
def cvt_hook(dst):
    def h(d):
        L = []
        for qt in range(5):
            L += dst.before(d, qt)
            for half in range(2):
                tb_ = TMP0 + ((qt * 2 + half) % 3) * 4
                for rr in range(2):
                    r = half * 2 + rr
                    L.append(f"v_accvgpr_read_b32 v{tb_+2*rr}, a{acc(2*d,qt)+r}")
                    L.append(f"v_accvgpr_read_b32 v{tb_+2*rr+1}, a{acc(2*d+1,qt)+r}")
                for rr in range(2):
                    r = half * 2 + rr
                    L.append(f"v_cvt_pk_bf16_f32 v{dst(d,qt,r)}, v{tb_+2*rr}, v{tb_+2*rr+1}")
            L += dst.after(d, qt)
        return L
    return h
class QDst:
    def __call__(self, d, qt, r): return qf(qt, r) + d
    def before(self, d, qt): return []
    def after(self, d, qt): return []

A(WV("X0"))
A("s_barrier")
stamp()
kq = kdma(); vq = vdma()
extra = [[] for _ in range(16)]
pre1 = {3: [WV("X1"), "s_barrier"], 7: [WV("X2"), "s_barrier"], 11: [WV("X3"), "s_barrier"]}
nv_done = 0
for item in opt["sched"].split("/"):
    st_, what = item.split(":"); st_ = int(st_)
    G_ = []
    for w_ in what.split("."):
        n_ = int(w_[1:])
        if w_[0] == "X": G_ += xdma_groups(n_)
        elif w_[0] == "K": G_ += kq[:n_]; kq = kq[n_:]
        else:
            G_ += vq[:n_]; vq = vq[n_:]; nv_done += n_
            assert nv_done <= 4 * ((st_ + 1) // 4) and nv_done <= 12, "V piece would overwrite live x"
    if opt["spr"] and st_ < 16 - TL: extra[st_] += G_
    else: pre1[st_] = pre1.get(st_, []) + compact(G_)
assert not kq
wl1 = {}
nxt = 2
for s_ in range(16 - TL):
    wl1[s_] = []
    tgt = min(s_ + 3, 15)
    if nxt <= tgt: wl1[s_].append(nxt); nxt += 1
    if nxt <= tgt and s_ == 2: wl1[s_].append(nxt); nxt += 1
assert nxt == 16
def kf(jt, u):
    n = u * 5 + jt
    return 220 + n * 4 if n < 9 else 160 + (n - 9) * 4
kaddr = ["v_and_b32 v22, 3, v2", "v_xor_b32 v22, v22, v3", "v_lshlrev_b32 v22, 2, v22", "v_lshrrev_b32 v16, 2, v2", "v_or_b32 v22, v22, v16",
       "v_lshlrev_b32 v22, 4, v22", "v_lshl_add_u32 v22, v2, 8, v22", "v_add_u32 v17, s47, v22"] + [f"v_xor_b32 v{17+u}, {u<<4}, v17" for u in range(1, 4)]
kread = []
for u in range(4):
    for jt in range(5):
        off = f" offset:{jt*4096}" if jt else ""
        kread.append(Ins(f"ds_read_b128 {a(kf(jt,u),4)}, v{17+u}{off}", lg=f"KF{u}"))
assert A.issued.get("K", 0) == 0
tail1 = {1: kaddr[:4], 2: kaddr[4:8], 3: kaddr[8:], 19: [WV("K")] + kread[:2], 20: kread[2:4], 21: kread[4:6], 22: kread[6:8], 23: kread[8:9]}
left = gemm(0, 3, extra, wl1, pre1, cvt_hook(QDst()), tail1)
stamp()
A("s_barrier")
A("s_lshl_b32 s38, s7, 3"); A("s_add_u32 s38, s38, s34")
A("s_cmp_eq_u32 s32, 0"); A("s_cselect_b32 s38, s38, 0x1000")
A("v_mov_b32 v16, 0"); A("v_mov_b32 v22, 1")
A("s_mov_b64 exec, 1")
CLRD = [Ins(f"buffer_store_byte v22, v16, {R(SDBG)}, s38 offen sc1", vm="CLRD")]
A(CLRD)
if opt.get("tlb", 0):
    A("s_lshl_b32 s38, s7, 2"); A("s_add_u32 s39, s38, s32"); A("s_lshl_b32 s39, s39, 3"); A("s_add_u32 s39, s39, s34"); A(f"s_mul_i32 s39, s39, {PW}")
    A(f"s_add_u32 s39, s39, {WSO+20480}")
    A(f"buffer_load_dword v4, v16, {R(SWS)}, s39 offen sc1 nt", vm="TLB")
    A("s_lshr_b32 s40, s34, 1"); A("s_add_u32 s38, s38, s40"); A(f"s_mul_i32 s38, s38, {8*PW}"); A(f"s_add_u32 s38, s38, {WSO+20480}")
    A("s_mul_i32 s39, s33, 163840"); A("s_and_b32 s41, s34, 1"); A("s_mul_i32 s41, s41, 65536+128"); A("s_add_u32 s39, s39, s41")
    A("s_lshl_b32 s41, s35, 10"); A("s_add_u32 s39, s39, s41"); A("s_lshl_b32 s41, s40, 8"); A("s_add_u32 s39, s39, s41")
    if opt.get("tlb", 0) == 2:
        A("s_mov_b64 exec, 0xff")
        A(f"v_mul_u32_u24 v5, {PW}, v1")
        A(f"buffer_load_dword v6, v5, {R(SWS)}, s38 offen sc1 nt", vm="TLB")
        A("s_mov_b64 exec, 7")
        A("v_lshlrev_b32 v5, 15, v1")
        A(f"buffer_load_dword v7, v5, {R(SOUT)}, s39 offen sc1 nt", vm="TLB")
    else:
        A(f"buffer_load_dword v6, v16, {R(SWS)}, s38 offen sc1 nt", vm="TLB")
        A(f"buffer_load_dword v7, v16, {R(SOUT)}, s39 offen sc1 nt", vm="TLB")
A("s_mov_b64 exec, -1")

def sprinkle(code, groups):
    if not groups: return list(code)
    out = []; n = len(code); gi = 0; m = len(groups)
    for i, c in enumerate(code):
        while gi < m and gi * n <= i * m:
            out += groups[gi]; gi += 1
        out.append(c)
    for g_ in groups[gi:]: out += g_
    return out

S0 = 124; T0 = 120
C1 = []
C1 += kread[9:]
def sreg(buf, jt): return S0 + buf * 20 + jt * 4
def smfma(qt):
    buf = qt & 1
    L = []
    for u in range(4):
        for jt in range(5):
            c = v(sreg(buf, jt), 4) if u else "0"
            L.append(f"v_mfma_f32_16x16x32_bf16 {v(sreg(buf,jt),4)}, {a(kf(jt,u),4)}, {v(qf(qt,u),4)}, {c}")
    return L
def pf(qt, jt): return qf(qt, 0) + jt * 2
def merge(mf, va):
    out = []; n = len(mf)
    if n == 0: return list(va)
    per = len(va) / n
    vi = 0
    for k, m_ in enumerate(mf):
        out.append(m_)
        tgt = int(round((k + 1) * per))
        while vi < tgt and vi < len(va): out.append(va[vi]); vi += 1
    out += va[vi:]
    return out
def softmax(qt, mf):
    b = S0 + (qt & 1) * 20
    m, t1 = T0, T0 + 2
    P1 = []
    P1.append(f"v_max3_f32 v{m}, v{b}, v{b+1}, v{b+2}")
    P1.append(f"v_max3_f32 v{t1}, v{b+3}, v{b+4}, v{b+5}")
    k = 6; cur = [m, t1]
    while k + 1 < 20:
        r = cur[(k // 2) & 1]
        P1.append(f"v_max3_f32 v{r}, v{r}, v{b+k}, v{b+k+1}"); k += 2
    P1.append(f"v_max_f32 v{m}, v{m}, v{t1}")
    def xl(op, r):
        return [f"v_mov_b32 v{t1}, v{r}", "s_nop 1", f"v_permlane32_swap_b32 v{r}, v{t1}", f"{op} v{r}, v{r}, v{t1}",
                f"v_mov_b32 v{t1}, v{r}", "s_nop 1", f"v_permlane16_swap_b32 v{r}, v{t1}", f"{op} v{r}, v{r}, v{t1}"]
    P1 += xl("v_max_f32", m)
    P1.append(f"v_mul_f32 v{m}, s45, v{m}")
    P2 = [f"v_pk_fma_f32 {v(b+2*k,2)}, {v(b+2*k,2)}, s[44:45], {v(m,2)} op_sel_hi:[1,1,0] neg_lo:[0,0,1] neg_hi:[0,0,1]" for k in range(10)]
    P3 = [f"v_exp_f32 v{b+k}, v{b+k}" for k in range(20)]
    P4 = ["s_nop 0", f"v_pk_add_f32 {v(m,2)}, {v(b,2)}, {v(b+2,2)}"]
    for k in range(2, 10): P4.append(f"v_pk_add_f32 {v(m,2)}, {v(m,2)}, {v(b+2*k,2)}")
    P4.append(f"v_add_f32 v{m}, v{m}, v{m+1}")
    P4 += xl("v_add_f32", m)
    P4 += [f"v_rcp_f32 v{m}, v{m}", "s_nop 0"]
    P4 += [f"v_pk_mul_f32 {v(b+2*k,2)}, {v(b+2*k,2)}, {v(m,2)} op_sel_hi:[1,0]" for k in range(10)]
    P5 = [f"v_cvt_pk_bf16_f32 v{pf(qt,jt)+j}, v{b+jt*4+2*j}, v{b+jt*4+2*j+1}" for jt in range(5) for j in range(2)]
    n1 = min(8, len(mf))
    return merge(mf[:n1], P1) + P2 + merge(mf[n1:], P3) + P4 + P5
s0 = smfma(0)
C1 += left[:12] + left[12:14]
rest = left[14:]
for u in range(4):
    C1.append(WL(f"KF{u}"))
    part = rest[u * 10:(u + 1) * 10] if u < 3 else rest[30:]
    C1 += merge(s0[u * 5:(u + 1) * 5], part)
def vf(T, jt): return T * 10 + jt * 2
def vreads(vv):
    L = []
    for T in (2 * vv, 2 * vv + 1):
        r = 15 if T & 1 else 22
        r2 = 0 if T & 1 else 23
        L.append(f"v_xor_b32 v{r}, {T<<5}, v16")
        L.append(f"v_xor_b32 v{r2}, {T<<5}, v21")
        for jt in range(4):
            off = f" offset:{jt*16384}" if jt else ""
            L.append(Ins(f"ds_read_b64_tr_b16 {a(vf(T,jt),2)}, v{r}{off}", lg=f"VF{vv}"))
        L.append(Ins(f"ds_read_b64_tr_b16 {a(vf(T,4),2)}, v{r2}", lg=f"VF{vv}"))
    return L
for qt in range(4):
    C1 += softmax(qt, smfma(qt + 1))
cut = int(len(C1) * opt["vfrac"] / 100)
A(sprinkle(C1[:cut], vq)); A(C1[cut:])
for j in range(4):
    A(f"s_add_u32 s{84+j}, s32, {j}"); A(f"s_and_b32 s{84+j}, s{84+j}, 3")
    A(f"s_add_u32 s{88+j}, s33, {j}"); A(f"s_and_b32 s{88+j}, s{88+j}, 3")
    A(f"s_mul_i32 s{92+j}, s{84+j}, 20480"); A(f"s_add_u32 s{92+j}, s{92+j}, 81920")
    A(f"s_lshl_b32 s{96+j}, s{88+j}, 6")
late = wgroups(16) + wgroups(17) + wgroups(18)
sm4 = softmax(4, [])
pvset = ["v_lshrrev_b32 v16, 2, v1", "v_and_b32 v22, 7, v16", "v_lshlrev_b32 v22, 1, v22", "v_bfe_u32 v15, v1, 1, 1", "v_xor_b32 v22, v22, v15",
         "v_lshlrev_b32 v22, 4, v22", "v_lshl_add_u32 v22, v16, 8, v22", "v_and_b32 v15, 1, v1", "v_lshl_add_u32 v22, v15, 3, v22",
         "v_add_u32 v16, s3, v22", "v_add_u32 v21, 0x10000, v16", "v_add_u32 v17, s47, v14"] + [f"v_xor_b32 v{17+vv}, {vv<<6}, v17" for vv in range(1, 4)]
ncut = len(sm4) - opt.get("vearly", 30)
A(pvset)
A(sm4[:ncut])
stamp()
A(WV("V"))
stamp()
A(vreads(0))
A(sm4[ncut:])
OA0 = 120; OO0 = 152
items = [(vv, qt) for vv in range(4) for qt in range(5)]
def pvm(n):
    vv, qt = items[n]; ob = OA0 + (n % 4) * 8
    L = []
    for m in range(3):
        for h in range(2):
            T = 2 * vv + h; d_ = v(ob + h * 4, 4)
            c = d_ if m else "0"
            if m < 2: L.append(f"v_mfma_f32_16x16x32_bf16 {d_}, {a(vf(T,2*m),4)}, {v(pf(qt,2*m),4)}, {c}")
            else: L.append(f"v_mfma_f32_16x16x16_bf16 {d_}, {a(vf(T,4),2)}, {v(pf(qt,4),2)}, {c}")
    return L
def pvo(n):
    vv, qt = items[n]; ob = OA0 + (n % 4) * 8; oo = OO0 + (n % 6) * 4
    L = [WL(f"OW{n-6}")] if n >= 6 else []
    L += [f"v_cvt_pk_bf16_f32 v{oo+j}, v{ob+2*j}, v{ob+2*j+1}" for j in range(4)]
    off = f" offset:{qt*4096}" if qt else ""
    L.append(Ins(f"ds_write_b128 v{17+vv}, {v(oo,4)}{off}", lg=f"OW{n}"))
    return L
C2 = ["s_nop 1"]
for n in range(20):
    vv, qt = items[n]
    fillers = []
    if n >= 2: fillers += pvo(n - 2)
    if qt in (0, 1) and vv < 3:
        vr = vreads(vv + 1); fillers += vr[:7] if qt == 0 else vr[7:]
    if qt == 0: C2.append(WL(f"VF{vv}"))
    C2 += merge(pvm(n), fillers)
C2 += pvo(18); C2.append("s_nop 2"); C2 += pvo(19)
A(sprinkle(C2, late))
stamp()
AD0 = 232
class PDst:
    def reg(self, d, qt): return QF0 + ((d * 5 + qt) % 6) * 4
    def __call__(self, d, qt, r): return self.reg(d, qt) + r
    def before(self, d, qt):
        n = d * 5 + qt
        return [WL(f"OWN{n-6}")] if n >= 6 else []
    def after(self, d, qt):
        off = f" offset:{d*1024}" if d else ""
        loff = f" offset:{d*256}" if d else ""
        return [Ins(f"buffer_store_dwordx4 {v(self.reg(d,qt),4)}, v{AD0+qt}, {R(SWS)}, s{70+qt} offen{off}" + pol("polS"), vm=f"ST{d}"),
                Ins(f"ds_write_b128 v{AD0+5+qt}, {v(self.reg(d,qt),4)}{loff}", lg=f"OWN{d*5+qt}")]
TS = [3, 36, 44]
TO = [45, 46, 47]
setup = ["s_lshl_b32 s38, s7, 2", "s_add_u32 s38, s38, s32", "s_lshl_b32 s38, s38, 3", "s_add_u32 s38, s38, s34", f"s_mul_i32 s38, s38, {PW}"]
setup += [f"s_add_u32 s{70+qt}, s38, {WSO+qt*4096}" for qt in range(5)] + ["v_lshlrev_b32 v22, 4, v1"]
setup += ["s_lshr_b32 s38, s34, 1",
         "s_and_b32 s39, s34, 1", "s_mul_i32 s39, s39, 10", "s_add_u32 s39, s39, s32",
         "s_lshl_b32 s40, s7, 2", "s_add_u32 s40, s40, s38", f"s_mul_i32 s40, s40, {8*PW}", f"s_add_u32 s40, s40, {WSO}",
         "s_mul_i32 s41, s33, 163840", "s_lshl_b32 s4, s35, 10", "s_add_u32 s41, s41, s4", "s_lshl_b32 s4, s38, 8", "s_add_u32 s41, s41, s4"]
for j in range(3):
    setup += [f"s_add_u32 s4, s39, {4*j}", "s_lshr_b32 s5, s4, 2", "s_and_b32 s6, s4, 3",
              f"s_lshl_b32 s{TS[j]}, s5, 12", "s_lshl_b32 s4, s6, 8", f"s_add_u32 s{TS[j]}, s{TS[j]}, s4", f"s_add_u32 s{TS[j]}, s{TS[j]}, s40",
              f"s_lshl_b32 s{TO[j]}, s5, 15", "s_lshl_b32 s4, s6, 6", f"s_add_u32 s{TO[j]}, s{TO[j]}, s4", f"s_add_u32 s{TO[j]}, s{TO[j]}, s41"]
setup += [["s_cmp_lt_u32 s32, 2", f"s_cselect_b32 s{TS[2]}, s{TS[2]}, {OOB:#x}", f"s_cselect_b32 s{TO[2]}, s{TO[2]}, {OOB:#x}"],
          "v_lshlrev_b32 v4, 10, v3", "v_lshl_add_u32 v4, v2, 4, v4",
          "v_lshlrev_b32 v5, 11, v2", "v_lshl_add_u32 v5, v3, 4, v5",
          "v_and_b32 v6, 7, v1", "v_lshlrev_b32 v6, 2, v6",
          "s_lshl_b32 s100, s7, 2", "s_add_u32 s100, s100, s38", "s_lshl_b32 s100, s100, 7", f"s_add_u32 s100, s100, {FLAG_OFF:#x}",
          "s_lshl_b32 s101, s7, 3",
          "v_mov_b32 v16, 0", "v_mov_b32 v17, 1", "s_mov_b32 s40, 0x01010101", "s_mov_b32 s41, 0",
          Ins(f"buffer_load_dwordx2 v[8:9], v16, {R(SDBG)}, s101 offen sc1", vm="PC")]
extra2 = [[] for _ in range(16)]
per = (len(setup) + 7) // 8
for k in range(8):
    chunk = setup[k * per:(k + 1) * per]
    for c0 in range(0, len(chunk), 2):
        g_ = []
        for x in chunk[c0:c0 + 2]: g_ += x if isinstance(x, list) else [x]
        extra2[2 + k].append(g_)
class Raw:
    def __init__(self, lines): self.lines = lines
_oldcall = Asm.__call__
def _call(self, x, vm=None, lg=None):
    if isinstance(x, Raw):
        for l in x.lines: self.lines.append(l if l.endswith(":") or l.startswith(";") else "    " + l)
        return
    return _oldcall(self, x, vm=vm, lg=lg)
Asm.__call__ = _call
SB = [84, 85, 86]; SOK = 87
fcount = [0]
def gather():
    k = fcount[0]; fcount[0] += 1
    L = ["s_or_b32 s38, s38, s39", f"L_g{k}:", "s_ff1_i32_b32 s4, s39", "s_bitset0_b32 s39, s4", f"s_mul_i32 s5, s4, {PW}", "s_lshl_b32 s4, s4, 10"]
    for j in range(3):
        L += [f"s_add_u32 m0, s{SB[j]}, s4", f"s_add_u32 s6, s{TS[j]}, s5", f"buffer_load_dwordx4 v4, {R(SWS)}, s6 offen " + opt.get("polR", "sc1 nt") + " lds"]
    L += ["s_cmp_lg_u32 s39, 0", f"s_cbranch_scc1 L_g{k}"]
    return L
def fetch():
    k = fcount[0]
    return ["v_cmp_eq_u32 vcc, 1, v10", f"s_and_b32 s39, vcc_lo, s{SOK}", "s_andn2_b32 s39, s39, s38", f"s_cbranch_scc0 L_f{k}",
            Raw(["; OPT_BEGIN"] + gather() + ["; OPT_END", f"L_f{k}:"])]
def poll(tag): return Ins(f"buffer_load_dword v10, v6, {R(SWS)}, s100 offen sc1", vm=tag)
tail2 = {}
tail2[1] = ["s_lshl_b32 s84, s32, 13", "s_add_u32 s85, s84, 0x8000", "s_add_u32 s86, s84, 0x10000",
            "s_cmp_lt_u32 s32, 2", "s_cselect_b32 s86, s86, 0x30000", "s_lshl_b32 s38, 1, s34",
            "s_and_b32 s4, s34, 1", "s_mul_i32 s4, s4, 10", "s_lshr_b32 s5, s34, 1", "s_cmp_eq_u32 s5, s32", "s_cselect_b32 s4, s4, 1000",
            "v_subrev_u32 v242, s4, v3",
            "s_lshl_b32 s5, s34, 10", "v_lshlrev_b32 v243, 4, v2", "v_add_u32 v243, s5, v243",
            f"v_mov_b32 v244, {OOB:#x}"]
tail2[2] = [WV("PC"), "v_and_b32 v8, v8, v9", "v_cmp_eq_u32 vcc, s40, v8", f"s_and_b32 s{SOK}, vcc_lo, 0xff", "v_add_u32 v7, s84, v22", "v_add_u32 v11, 0x10000, v7"]
for qt in range(5):
    tail2.setdefault(3 + qt // 2, [])
    tail2[3 + qt // 2] += [f"v_add_u32 v245, {4*qt}, v242", "v_cmp_gt_u32 vcc, 10, v245", "v_lshl_add_u32 v245, v245, 13, v243", "s_nop 0",
                           f"v_cndmask_b32 v{AD0+5+qt}, v244, v245, vcc", f"v_cndmask_b32 v{AD0+qt}, v22, v244, vcc"]
pts = [8 * TL2 - int(x) for x in str(opt.get("polls", "4")).split(".")]
for i_, g0 in enumerate(pts):
    tail2.setdefault(g0, [])
    if i_ > 0: tail2[g0] += [WV(f"PF{i_-1}")] + fetch()
    tail2[g0].append(poll(f"PF{i_}"))
wl2 = {}
nxt = 19
lastw = 30 if TL2 == 5 else 31
for s_ in range(16 - TL2):
    wl2[s_] = []
    if nxt <= lastw: wl2[s_].append(nxt); nxt += 1
    if s_ == 1 and TL2 >= 4: wl2[s_].append(nxt); nxt += 1
    assert nxt - 1 - 16 <= s_ + 4
assert nxt == lastw + 1, nxt
left = gemm(16, TL2, extra2, wl2, {3: ["s_barrier"]}, cvt_hook(PDst()), tail2, late_w=(TL2 == 5))
stamp()
A("s_nop 7")
A(left)
A(WV("ST3"))
A("s_mov_b64 exec, 1")
A(f"buffer_store_dword v17, v16, {R(SWS)}, s75 offen sc1")
A("s_mov_b64 exec, -1")
stamp()
A(fetch())
A("s_waitcnt lgkmcnt(0)")
A("s_barrier")
A("s_cmp_eq_u32 s38, 0xff")
A("s_cbranch_scc1 L_go")
A.label("L_poll0")
A("v_cmp_ne_u32 vcc, s40, v8")
A("s_cbranch_vccz L_poll0e")
A("s_add_u32 s41, s41, 1"); A("s_cmp_gt_u32 s41, 0x40000"); A("s_cbranch_scc1 L_poll0e")
A(f"buffer_load_dwordx2 v[8:9], v16, {R(SDBG)}, s101 offen sc1")
A("s_waitcnt vmcnt(0)")
A("v_and_b32 v8, v8, v9")
A("s_branch L_poll0")
A.label("L_poll0e")
A(f"s_mov_b32 s{SOK}, 0xff")
A.label("L_poll1")
A(poll("PFx"))
A("s_add_u32 s41, s41, 1")
A("s_waitcnt vmcnt(0)")
A(fetch())
A("s_cmp_eq_u32 s38, 0xff")
A("s_cbranch_scc1 L_go")
A("s_cmp_lt_u32 s41, 0x80000")
A("s_cbranch_scc1 L_poll1")
A.label("L_go")
stamp()
A("s_mov_b32 s4, 0xffff0000")
A("s_waitcnt vmcnt(0)")
def rreg(j, h2): return 24 + (j * 8 + h2) * 4
rd = [Ins(f"ds_read_b128 {v(rreg(j,h2),4)}, v{7 if j < 2 else 11} offset:{(j&1)*32768+h2*1024}", lg=f"R{j}_{h2}") for j in range(3) for h2 in range(8)]
A(rd[:12])
nr = 12
for j in range(3):
    sb = 120 + j * 8
    for h2 in range(8):
        A(WL(f"R{j}_{h2}"))
        for r in range(4):
            src = rreg(j, h2) + r
            if h2 == 0:
                A(f"v_lshlrev_b32 v{sb+2*r}, 16, v{src}"); A(f"v_and_b32 v{sb+2*r+1}, s4, v{src}")
            else:
                tp = 144 + (r & 1) * 2
                A(f"v_lshlrev_b32 v{tp}, 16, v{src}"); A(f"v_and_b32 v{tp+1}, s4, v{src}")
                A(f"v_pk_add_f32 {v(sb+2*r,2)}, {v(sb+2*r,2)}, {v(tp,2)}")
        if nr < 24: A(rd[nr]); nr += 1
    ob = 148 + j * 4
    for r in range(4): A(f"v_cvt_pk_bf16_f32 v{ob+r}, v{sb+2*r}, v{sb+2*r+1}")
    A("s_nop 1")
    A(f"v_permlane32_swap_b32 v{ob}, v{ob+2}"); A(f"v_permlane32_swap_b32 v{ob+1}, v{ob+3}")
    A("s_nop 1")
    A(f"v_permlane16_swap_b32 v{ob}, v{ob+1}"); A(f"v_permlane16_swap_b32 v{ob+2}, v{ob+3}")
    A(f"buffer_store_dwordx4 {v(ob,4)}, v5, {R(SOUT)}, s{TO[j]} offen" + pol("polO"))
if STAMPS:
    A("s_waitcnt vmcnt(0)")
    stamp()
    n = nst[0]
    assert n <= 11
    A("s_lshl_b32 s38, s2, 2"); A("s_add_u32 s38, s38, s32"); A(f"s_mul_i32 s38, s38, {n*8}"); A(f"s_add_u32 s38, s38, {200<<20}")
    for i in range(n):
        A(f"v_mov_b32 v{24+2*i}, s{sreg_st(i)}"); A(f"v_mov_b32 v{25+2*i}, s{sreg_st(i)+1}")
    A("v_mov_b32 v22, 0")
    A("s_mov_b64 exec, 1")
    for i in range(n):
        A(f"buffer_store_dwordx2 {v(24+2*i,2)}, v22, {R(SWS)}, s38 offen offset:{i*8}")
    sys.stderr.write(f"stamps per wave: {n}\n")
A.label("L_main_end")
A("s_endpgm")
A.label("L_code_end")
A.raw('.section .rodata,"a"')
A.raw(".p2align 6")
kernel_desc(A, KN, 512, 102, 256)
txt = A.text()
import re as _re
errs = check_hazards(txt) + check_hazards(_re.sub(r"; OPT_BEGIN.*?; OPT_END", "", txt, flags=_re.S))
for e in errs[:40]: sys.stderr.write("HAZARD " + e + "\n")
sys.stderr.write(f"{len(errs)} hazards, {len(txt)} bytes\n")
print(txt)
```

```python
import sys, re
from asmlib import *
src = open(sys.argv[1]).read(); n = int(sys.argv[2]); ea = sys.argv[3]; eb = sys.argv[4]
KN = "concat_heads__gqa_block_cached__gqa_block_cached__near_ridge_kernel"
L1 = "; @launch grid=(256,1,1) block=(256,1,1) lds=163840\n"
A = Asm()
kernel_header(A, "diag_kernel")
A("s_load_dwordx2 s[4:5], s[0:1], 96")
A("s_memrealtime s[10:11]")
A("s_cmp_lg_u32 s2, 0"); A("s_cbranch_scc1 L_diag_end")
A("s_mov_b32 s6, 0x10000000"); A("s_mov_b32 s7, 0x20000")
A("s_waitcnt lgkmcnt(0)")
A(f"v_mul_u32_u24 v1, {n*8}, v0")
def val(e, dst):
    if e == "now": A(f"s_mov_b32 s{dst}, 0"); return
    m = re.match(r"(min|max)(\d+)(?:w(\d))?", e)
    kind, idx, wsel = m.group(1), int(m.group(2)), m.group(3)
    if wsel is None: A(f"v_mul_u32_u24 v1, {n*8}, v0")
    else:
        A("v_and_b32 v1, 60, v0"); A(f"v_add_u32 v1, {wsel}, v1"); A(f"v_mul_u32_u24 v1, {n*8}, v1")
    for k in range(16):
        A(f"s_mov_b32 s8, {(200<<20) + k*64*n*8 + idx*8}")
        A(f"buffer_load_dword v{8+k}, v1, s[4:7], s8 offen")
    A("s_waitcnt vmcnt(0)")
    op = "v_max_u32" if kind == "min" else "v_min_u32"
    for k in range(16): A(f"v_sub_u32 v{8+k}, s10, v{8+k}")
    for k in range(1, 16): A(f"{op} v8, v8, v{8+k}")
    A("s_nop 1")
    A(f"v_readlane_b32 s{dst}, v8, 0")
    for l in range(1, 64):
        A(f"v_readlane_b32 s9, v8, {l}")
        A(f"{'s_max_u32' if kind == 'min' else 's_min_u32'} s{dst}, s{dst}, s9")
val(ea, 12); val(eb, 13)
A("s_sub_u32 s12, s12, s13")
A("s_min_u32 s12, s12, 10000")
A("s_lshl_b32 s12, s12, 2")
A("s_add_u32 s12, s12, 500")
A.label("L_spin")
A("s_memrealtime s[14:15]")
A("s_waitcnt lgkmcnt(0)")
A("s_sub_u32 s16, s14, s10")
A("s_cmp_lt_u32 s16, s12")
A("s_cbranch_scc1 L_spin")
A.label("L_diag_end")
A("s_endpgm")
D = Asm(); D.raw(".p2align 6"); kernel_desc(D, "diag_kernel", 32, 24, 32)
out = src.replace(L1, f"; @launch kernel={KN} grid=(256,1,1) block=(256,1,1) lds=163840\n; @launch kernel=diag_kernel grid=(1,1,1) block=(64,1,1) lds=0\n")
out = out.replace('.section .rodata,"a"', A.text() + '.section .rodata,"a"')
out += D.text()
print(out)
```
